```python
import torch

def _softmax(x, axis=-1):
    return torch.softmax(x, dim=axis)
def _gelu(x):
    return torch.nn.functional.gelu(x, approximate="tanh")
def _silu(x):
    return torch.nn.functional.silu(x)
def _sigmoid(x):
    return torch.sigmoid(x)
def _layernorm(x, axis=-1, eps=1e-5):
    m = x.mean(dim=axis, keepdim=True)
    v = x.var(dim=axis, keepdim=True, unbiased=False)
    return (x - m) / torch.sqrt(v + eps)
def _scatter_add(tgt, idx, src, axis=0):
    return tgt.clone().index_add_(axis, idx, src)
def _segment_sum(src, seg, n):
    out = torch.zeros((n,) + src.shape[1:], dtype=src.dtype)
    return out.index_add_(0, seg, src)
def _pad(x, pw):
    flat = tuple(v for pair in reversed(pw) for v in pair)
    return torch.nn.functional.pad(x, flat)

kernel_name = 'interleave_layers__sliding_block_cached__glu_gated_swiglu__decode'

def setup_inputs():

    _w = (lambda a: (lambda t: t.to(torch.bfloat16) if t.is_floating_point() else t)(torch.as_tensor(a)))
    def _A_setup():
        B, Sq, D = 1, 1, 640
        Hq, Hkv, Sk, Dh = 32, 32, 32768, 192
        assert Hq % Hkv == 0, (Hq, Hkv)
        return {
            "x": _w((lambda *s: torch.randn(*s, dtype=torch.bfloat16) * 0.05)(B, Sq, D)),
            "k_cache": _w((lambda *s: torch.randn(*s, dtype=torch.bfloat16) * 0.8)(B, Hkv, Sk, Dh)),
            "v_cache": _w((lambda *s: torch.randn(*s, dtype=torch.bfloat16) * 1.6)(B, Hkv, Sk, Dh)),
            "wq": _w((lambda *s: torch.randn(*s, dtype=torch.bfloat16) * 0.8)(D, Hq * Dh) * (D ** -0.5)),
            "wo": _w((lambda *s: torch.randn(*s, dtype=torch.bfloat16) * 1.6)(Hq * Dh, D) * ((Hq * Dh) ** -0.5)),
        }
    _A_in = _A_setup()

    def _B_setup():
        B, S, D, F = 1, 1, 640, 1536
        return {
            "x": _w((lambda *s: torch.randn(*s, dtype=torch.bfloat16) * 0.05)(B, S, D)),
            "w1": _w((lambda *s: torch.randn(*s, dtype=torch.bfloat16) * 0.4)(D, F) * (2.0 / D) ** 0.5),
            "w3": _w((lambda *s: torch.randn(*s, dtype=torch.bfloat16) * 0.4)(D, F) * (2.0 / D) ** 0.5),
            "w2": _w((lambda *s: torch.randn(*s, dtype=torch.bfloat16) * 0.4)(F, D) * (2.0 / F) ** 0.5),
        }
    _B_in = _B_setup()

    return {
        "A_x": _A_in["x"],
        "A_k_cache": _A_in["k_cache"],
        "A_v_cache": _A_in["v_cache"],
        "A_wq": _A_in["wq"],
        "A_wo": _A_in["wo"],
        "B_x": _B_in["x"],
        "B_w1": _B_in["w1"],
        "B_w3": _B_in["w3"],
        "B_w2": _B_in["w2"],
    }

def reference(A_x, A_k_cache, A_v_cache, A_wq, A_wo, B_x, B_w1, B_w3, B_w2):
    def _A_ref(x, k_cache, v_cache, wq, wo):
        B, Sq, D = x.shape
        Hq, Dh = 32, 192
        Hkv, Sk = k_cache.shape[1], k_cache.shape[2]
        W = min(4096, max(256, Sk // 4))
        rep = Hq // Hkv
        q = (lambda x, *d: x.permute(*d))((x @ wq).reshape(B, Sq, Hq, Dh), 0, 2, 1, 3)
        k = (lambda x, n, axis: torch.repeat_interleave(x, n, dim=axis))(k_cache[:, :, Sk - W:, :], rep, axis=1)
        v = (lambda x, n, axis: torch.repeat_interleave(x, n, dim=axis))(v_cache[:, :, Sk - W:, :], rep, axis=1)
        scores = torch.einsum("bhqd,bhkd->bhqk", q, k) * (Dh ** -0.5)
        p = _softmax(scores, axis=-1)
        o = torch.einsum("bhqk,bhkd->bhqd", p, v)
        return (lambda x, *d: x.permute(*d))(o, 0, 2, 1, 3).reshape(B, Sq, Hq * Dh) @ wo

    def _B_ref(x, w1, w3, w2):
        gate = torch.einsum("bsd,df->bsf", x, w1)
        up = torch.einsum("bsd,df->bsf", x, w3)
        h = _silu(gate) * up
        out = torch.einsum("bsf,fd->bsd", h, w2)
        return out

    x = A_x
    x = x + _A_ref(_layernorm(x, axis=-1), A_k_cache, A_v_cache, A_wq, A_wo)
    x = x + _B_ref(_layernorm(x, axis=-1), B_w1, B_w3, B_w2)
    x = x + _A_ref(_layernorm(x, axis=-1), A_k_cache, A_v_cache, A_wq, A_wo)
    x = x + _B_ref(_layernorm(x, axis=-1), B_w1, B_w3, B_w2)
    return x
```

```python
import os, sys, re
NAME="interleave_layers__sliding_block_cached__glu_gated_swiglu__decode"
DBG=int(os.environ.get("DBG","0"))
OUT=os.environ.get("OUT",f"/code/{NAME}.s")
SLEEP=int(os.environ.get("SLEEP","1"))
o=[]; tail=[]
def e(s): o.append("    "+s)
def lab(s): o.append(s+":")
L_WO=0; L_W13=49152; L_WQ=65536; L_S=L_WQ+30720
L_QB=L_S+2048; L_ZERO=L_QB+384; L_ML=L_QB+448; L_OACC=L_QB+512; LDSSZ=L_OACC+6144
LS=0x100000
W_Q=0; W_QS=0x60000; W_XR=0x61000; W_O=0x75000; W_LSE=0x8D000; W_Y=0x8E000; W_G=0xA2000; W_GS=0xC0000; W_X1=0xC1000; W_Y2=0xE1000
SK,SV,SW,SWQ,SWO,SW13,SX,SOUT,SDBG=8,12,16,20,24,28,32,36,40
sWv,sX,sR,sH,sS,sLB,sFAST,sCNT=44,45,46,47,48,49,50,51
sT0,sT1,sT2,sKV,sP,sCG,sMAT,sCGRP,sRG,sF,sADD,sFIRST=52,53,54,55,56,57,58,59,3,4,5,6
sEX=60
sFLG=62
sM16=(64,65)
STB=64
def srd(d,lo,nbytes):
    e(f"s_mov_b32 s{d}, s{lo}"); e(f"s_and_b32 s{d+1}, s{lo+1}, 0xffff")
    e(f"s_mov_b32 s{d+2}, {nbytes}"); e(f"s_mov_b32 s{d+3}, 0x20000")
def S(d): return f"s[{d}:{d+3}]"
def V(b,n=4): return f"v[{b}:{b+n-1}]" if n>1 else f"v{b}"
NST=16
def stamp(i):
    if DBG: e(f"s_memrealtime s[{STB+2*i}:{STB+2*i+1}]")
def flush_stamps(tag):
    if not DBG: return
    e("s_waitcnt lgkmcnt(0)")
    e(f"s_cmp_lg_u32 s{sWv}, {int(os.environ.get('DBGW','0'))}"); e(f"s_cbranch_scc1 NOFL{tag}")
    e(f"s_lshl_b32 s{sT0}, s2, 8"); e(f"s_add_u32 s{sT0}, s{sT0}, 0x40000000"); e(f"s_lshr_b32 s{sT1}, s{sLB}, 14"); e(f"s_add_u32 s{sT0}, s{sT0}, s{sT1}")
    e("v_mov_b32 v27, 0"); e("s_mov_b64 exec, 1")
    for k in range(NST):
        e(f"v_mov_b32 v26, s{STB+2*k}"); e(f"buffer_store_dword v26, v27, {S(SW)}, s{sT0} offen offset:{4*k}")
    e("s_mov_b64 exec, -1")
    lab(f"NOFL{tag}")
vT,vL,vA=0,1,2
vQA=3
vMK=9
vTMP=13
BO=80
def kreg(i): return f"a[{4*i}:{4*i+3}]"
def vreg(i): return f"a[{192+4*i}:{195+4*i}]" if i<16 else f"v[{128+4*(i-16)}:{131+4*(i-16)}]"
DPP=" row_mask:0xf bank_mask:0xf"
pid=[0]
def pub(stores, intra):
    if not intra:
        for s in stores: e(s+" sc1")
        return
    i=pid[0]; pid[0]+=1
    e(f"s_cmp_eq_u32 s{sFAST}, 0"); e(f"s_cbranch_scc1 SLOW{i}")
    for s in stores: e(s)
    lab(f"PUBD{i}")
    tail.append(f"SLOW{i}:")
    for s in stores: tail.append("    "+s+" sc1")
    tail.append(f"    s_branch PUBD{i}")
def retry(lbl, okl, chk):
    e(f"v_cmp_u_f32 vcc, {chk[0]}, {chk[1]}")
    e(f"s_cbranch_vccz {okl}")
    e(f"s_add_u32 s{sCNT}, s{sCNT}, 1");
    if SLEEP>=0: e(f"s_sleep {SLEEP}")
    e(f"s_cmp_lt_u32 s{sCNT}, 0x8000"); e(f"s_cbranch_scc1 {lbl}")
    lab(okl)
def a_rowlocal(dst):
    e(f"v_and_b32 v{dst}, 31, v{vL}"); e(f"s_lshl_b32 s{sT0}, s{sWv}, 5"); e(f"v_add_u32 v{dst}, s{sT0}, v{dst}")
def a_xr_pub(dst):
    a_rowlocal(dst); e(f"s_mul_i32 s{sT0}, s{sH}, 2560"); e(f"s_mul_i32 s{sT1}, s{sS}, 320"); e(f"s_add_u32 s{sT0}, s{sT0}, s{sT1}"); e(f"s_add_u32 s{sT0}, s{sT0}, {W_XR}")
    e(f"v_lshl_add_u32 v{dst}, v{dst}, 2, s{sT0}")
def a_q_pub(dst):
    e(f"s_mul_i32 s{sT0}, s{sH}, 12288"); e(f"s_mul_i32 s{sT1}, s{sWv}, 3072"); e(f"s_add_u32 s{sT0}, s{sT0}, s{sT1}"); e(f"s_lshl_b32 s{sT1}, s{sS}, 7"); e(f"s_add_u32 s{sT0}, s{sT0}, s{sT1}")
    if W_Q: e(f"s_add_u32 s{sT0}, s{sT0}, {W_Q}")
    e(f"v_lshl_add_u32 v{dst}, v{vL}, 3, s{sT0}")
def a_qs_pub(dst):
    e(f"s_lshl_b32 s{sT0}, s{sH}, 7"); e(f"s_lshl_b32 s{sT1}, s{sS}, 3"); e(f"s_add_u32 s{sT0}, s{sT0}, s{sT1}"); e(f"s_add_u32 s{sT0}, s{sT0}, {W_QS}"); e(f"v_mov_b32 v{dst}, s{sT0}")
def a_o_pub(dst):
    e(f"s_lshl_b32 s{sT0}, s{sH}, 3"); e(f"s_add_u32 s{sT0}, s{sT0}, s{sS}"); e(f"s_mul_i32 s{sT0}, s{sT0}, 384"); e(f"s_mul_i32 s{sT1}, s{sWv}, 96"); e(f"s_add_u32 s{sT0}, s{sT0}, s{sT1}"); e(f"s_add_u32 s{sT0}, s{sT0}, {W_O}")
    e(f"v_lshl_add_u32 v{dst}, v{vL}, 2, s{sT0}")
    e(f"s_lshl_b32 s{sT0}, s{sH}, 7"); e(f"s_lshl_b32 s{sT1}, s{sS}, 2"); e(f"s_add_u32 s{sT0}, s{sT0}, s{sT1}"); e(f"s_add_u32 s{sT0}, s{sT0}, {W_LSE}")
    e(f"v_writelane_b32 v{dst}, s{sT0}, 24")
def a_y_pub(dst):
    e(f"s_lshl_b32 s{sT0}, s{sCG}, 2"); e(f"s_add_u32 s{sT0}, s{sT0}, s{sWv}"); e(f"s_lshl_b32 s{sT0}, s{sT0}, 4"); e(f"s_lshl_b32 s{sT1}, s{sX}, 1"); e(f"s_add_u32 s{sT0}, s{sT0}, s{sT1}"); e(f"s_add_u32 s{sT0}, s{sT0}, s{sP}")
    e(f"s_lshl_b32 s{sT0}, s{sT0}, 7"); e(f"s_add_u32 s{sT0}, s{sT0}, {W_Y}"); e(f"v_lshl_add_u32 v{dst}, v{vL}, 2, s{sT0}")
def a_y2_pub(dst):
    e(f"s_lshl_b32 s{sT0}, s{sCG}, 2"); e(f"s_add_u32 s{sT0}, s{sT0}, s{sWv}"); e(f"s_lshl_b32 s{sT0}, s{sT0}, 3"); e(f"s_add_u32 s{sT0}, s{sT0}, s{sX}")
    e(f"s_lshl_b32 s{sT0}, s{sT0}, 7"); e(f"s_add_u32 s{sT0}, s{sT0}, {W_Y2}"); e(f"v_lshl_add_u32 v{dst}, v{vL}, 2, s{sT0}")
def a_x1_pub(dst):
    a_rowlocal(dst); e(f"s_lshl_b32 s{sT0}, s{sX}, 5"); e(f"s_add_u32 s{sT0}, s{sT0}, s{sF}"); e(f"s_lshl_b32 s{sT0}, s{sT0}, 9"); e(f"s_add_u32 s{sT0}, s{sT0}, {W_X1}")
    e(f"v_lshl_add_u32 v{dst}, v{dst}, 2, s{sT0}")
def a_g_pub(dst):
    e(f"s_mul_i32 s{sT0}, s{sX}, 12"); e(f"s_lshl_b32 s{sT1}, s{sCGRP}, 2"); e(f"s_add_u32 s{sT0}, s{sT0}, s{sT1}"); e(f"s_add_u32 s{sT0}, s{sT0}, s{sWv}"); e(f"s_mul_i32 s{sT0}, s{sT0}, 10")
    e(f"s_mul_i32 s{sT1}, s{sMAT}, 5"); e(f"s_add_u32 s{sT0}, s{sT0}, s{sT1}"); e(f"s_add_u32 s{sT0}, s{sT0}, s{sRG}"); e(f"s_lshl_b32 s{sT0}, s{sT0}, 7"); e(f"s_add_u32 s{sT0}, s{sT0}, {W_G}")
    e(f"v_lshl_add_u32 v{dst}, v{vL}, 3, s{sT0}")
def a_gs_pub(dst):
    e(f"s_lshl_b32 s{sT0}, s{sX}, 5"); e(f"s_add_u32 s{sT0}, s{sT0}, s{sF}"); e(f"s_lshl_b32 s{sT0}, s{sT0}, 3"); e(f"s_add_u32 s{sT0}, s{sT0}, {W_GS}"); e(f"v_mov_b32 v{dst}, s{sT0}")
def ex(mask): e(f"s_mov_b64 exec, {mask}")
def swapadd(v,t,kind,op="add"):
    e(f"v_mov_b32 v{t}, v{v}"); e("s_nop 1"); e(f"v_permlane{kind}_swap_b32 v{v}, v{t}"); e(f"v_{op}_f32 v{v}, v{v}, v{t}")
def MF(d,a,b,c): e(f"v_mfma_f32_16x16x32_bf16 {d}, {a}, {b}, {c}")

o.append(f"; @launch grid=(256,1,1) block=(256,1,1) lds={LDSSZ}")
o.append('.amdgcn_target "amdgcn-amd-amdhsa--gfx950"\n.text')
o.append(f".globl {NAME}_kernel\n.p2align 8\n.type {NAME}_kernel,@function\n{NAME}_kernel:")
e("s_cmp_ge_u32 s2, 256"); e("s_cbranch_scc1 DONE")
e("s_load_dwordx16 s[64:79], s[0:1], 0"); e("s_load_dwordx8 s[80:87], s[0:1], 64")
if DBG or os.environ.get("SPIN"): e("s_memrealtime s[98:99]")
e(f"v_and_b32 v{vL}, 63, v0"); e("v_lshrrev_b32 v13, 6, v0")
e(f"s_and_b32 s{sX}, s2, 7"); e(f"v_readfirstlane_b32 s{sWv}, v13")
e(f"s_lshr_b32 s{sR}, s2, 3"); e(f"s_lshr_b32 s{sH}, s{sR}, 3"); e(f"s_lshl_b32 s{sT0}, s{sX}, 2"); e(f"s_add_u32 s{sH}, s{sH}, s{sT0}"); e(f"s_and_b32 s{sS}, s{sR}, 7")
e(f"v_lshrrev_b32 v19, 4, v{vL}"); e(f"v_and_b32 v20, 3, v{vL}"); e(f"v_bfe_u32 v21, v{vL}, 2, 2")
e("v_mul_u32_u24 v16, 384, v21"); e("v_lshl_add_u32 v16, v20, 4, v16")
e(f"v_lshrrev_b32 v22, 5, v{vL}"); e("v_mul_u32_u24 v17, 1536, v22"); e("v_add_u32 v17, v17, v16"); e("v_and_b32 v22, 1, v19"); e("v_lshl_add_u32 v17, v22, 6, v17"); e("v_add_u32 v17, 256, v17")
e("v_lshl_add_u32 v16, v19, 6, v16")
e(f"s_mul_i32 s{sKV}, s{sH}, 12582912"); e(f"s_mul_i32 s{sT0}, s{sS}, {512*384}"); e(f"s_add_u32 s{sKV}, s{sKV}, s{sT0}"); e(f"s_mul_i32 s{sT0}, s{sWv}, 3072"); e(f"s_add_u32 s{sKV}, s{sKV}, s{sT0}"); e(f"s_add_u32 s{sKV}, s{sKV}, {28672*384}")
e("s_waitcnt lgkmcnt(0)")
srd(SK,66,402653184)
def kloads(g0,g1):
    for g in range(g0,g1):
        e(f"s_add_u32 s{sT2}, s{sKV}, {g*12288}")
        e(f"buffer_load_dwordx4 {kreg(3*g)}, v16, {S(SK)}, s{sT2} offen nt")
        e(f"buffer_load_dwordx4 {kreg(3*g+1)}, v16, {S(SK)}, s{sT2} offen offset:1536 nt")
        e(f"buffer_load_dwordx4 {kreg(3*g+2)}, v17, {S(SK)}, s{sT2} offen nt")
def vloads(g0,g1,va):
    for g in range(g0,g1):
        e(f"s_add_u32 s{sT2}, s{sKV}, {g*12288}")
        for j in range(3): e(f"buffer_load_dwordx4 {vreg(3*g+j)}, v{va}, {S(SV)}, s{sT2} offen offset:{128*j} nt")
KA=int(os.environ.get("KA","4")); KB=int(os.environ.get("KB","10"))
kloads(0,KA)
srd(SV,68,402653184); srd(SW,86,1610612736); srd(SWQ,70,7864320); srd(SX,64,1280); srd(SOUT,82,1280); srd(SDBG,84,256)
e(f"s_cmp_ge_u32 s{sR}, 10"); e(f"s_cselect_b32 s{sP}, 1, 0"); e(f"s_cmp_ge_u32 s{sR}, 20"); e(f"s_cselect_b32 s{sT0}, 2, s{sP}"); e(f"s_mul_i32 s{sT0}, s{sT0}, 10"); e(f"s_sub_u32 s{sCG}, s{sR}, s{sT0}")
e(f"s_min_u32 s{sF}, s{sR}, 29"); e(f"s_cmp_ge_u32 s{sF}, 15"); e(f"s_cselect_b32 s{sMAT}, 1, 0"); e(f"s_mul_i32 s{sT0}, s{sMAT}, 15"); e(f"s_sub_u32 s{sT0}, s{sF}, s{sT0}")
e(f"s_mul_i32 s{sCGRP}, s{sT0}, 52"); e(f"s_lshr_b32 s{sCGRP}, s{sCGRP}, 8"); e(f"s_mul_i32 s{sT1}, s{sCGRP}, 5"); e(f"s_sub_u32 s{sRG}, s{sT0}, s{sT1}")
e(f"s_cmp_ge_u32 s{sR}, 20"); e(f"s_cselect_b32 s{SWO}, s80, s72"); e(f"s_cselect_b32 s{SWO+1}, s81, s73"); e(f"s_mov_b32 s{SWO+2}, 7864320"); e(f"s_cselect_b32 s{SWO+2}, 1966080, s{SWO+2}"); e(f"s_and_b32 s{SWO+1}, s{SWO+1}, 0xffff"); e(f"s_mov_b32 s{SWO+3}, 0x20000")
e(f"s_cmp_eq_u32 s{sMAT}, 1"); e(f"s_cselect_b32 s{SW13}, s78, s76"); e(f"s_cselect_b32 s{SW13+1}, s79, s77"); e(f"s_and_b32 s{SW13+1}, s{SW13+1}, 0xffff"); e(f"s_mov_b32 s{SW13+2}, 1966080"); e(f"s_mov_b32 s{SW13+3}, 0x20000")
e(f"s_cmp_ge_u32 s{sR}, 20"); e(f"s_cselect_b32 s{sT0}, 0, s{sP}"); e(f"s_or_b32 s{sT0}, s{sT0}, s{sX}"); e(f"s_cmp_eq_u32 s{sT0}, 0"); e(f"s_cselect_b32 s{sFLG}, 1.0, 0")
e(f"s_mov_b32 s{sLB}, 0"); e(f"s_mov_b32 s{sFAST}, 0"); e(f"s_mov_b32 s{sFIRST}, 1")
if DBG: e(f"s_mov_b32 s{STB}, s98")
a_rowlocal(23); e("v_min_u32 v23, 79, v23"); e(f"s_mul_i32 s{sT0}, s{sS}, 160"); e("v_lshlrev_b32 v23, 1, v23"); e("v_mov_b32 v30, 0")
e(f"buffer_load_short_d16_hi v30, v23, {S(SX)}, s{sT0} offen")
for ee in range(3):
    e(f"v_add_u32 v24, {64*ee}, v{vL}"); e("v_mul_u32_u24 v25, 171, v24"); e("v_lshrrev_b32 v25, 12, v25"); e("v_mul_u32_u24 v26, 24, v25"); e("v_sub_u32 v26, v24, v26")
    e("v_mul_u32_u24 v25, 12288, v25"); e(f"v_lshl_add_u32 v{27+ee}, v26, 4, v25")
assert all((c*171)>>12==c//24 for c in range(192))
e(f"s_mul_i32 s{sT0}, s{sS}, {80*12288}"); e(f"s_mul_i32 s{sT1}, s{sH}, 384"); e(f"s_add_u32 s{sT0}, s{sT0}, s{sT1}"); e(f"s_mul_i32 s{sT1}, s{sWv}, {8*12288}"); e(f"s_add_u32 s{sT0}, s{sT0}, s{sT1}")
e(f"s_mul_i32 s{sT1}, s{sWv}, 3072")
for k in range(3):
    if k==2: e(f"s_cmp_ge_u32 s{sWv}, 2"); e("s_cbranch_scc1 WQD")
    for ee in range(3):
        e(f"s_add_u32 m0, s{sT1}, {L_WQ+12288*k+1024*ee}")
        e(f"s_add_u32 s{sT2}, s{sT0}, {k*32*12288}") if ee==0 else e("s_nop 0")
        e(f"buffer_load_dwordx4 v{27+ee}, {S(SWQ)}, s{sT2} offen nt lds")
lab("WQD")
e("v_mov_b32 v32, -1"); e("v_mov_b32 v33, -1"); e(f"s_mov_b32 s{sADD}, {LS}")
def clr(addr,w,imms=(0,)):
    for so in ("0",f"s{sADD}"):
        for im in imms:
            e(f"buffer_store_{'dwordx2' if w==2 else 'dword'} {V(32,w)}, v{addr}, {S(SW)}, {so} offen offset:{im} sc1")
a_q_pub(24); a_qs_pub(25); a_o_pub(26); a_xr_pub(31); a_rowlocal(34)
ex("0xffff"); clr(24,2,(0,1024,2048))
ex("0x1ffffff"); clr(26,1)
ex(1); clr(25,2)
ex(-1); e("v_cmp_gt_u32 vcc, 80, v34"); e("s_and_b32 vcc_hi, vcc_hi, 0"); e("s_mov_b64 exec, vcc"); e("s_cbranch_execz NOXR"); clr(31,1); lab("NOXR"); ex(-1)
e(f"s_cmp_ge_u32 s{sR}, 30"); e("s_cbranch_scc1 CLRD")
a_g_pub(24); a_gs_pub(25); a_x1_pub(26)
e(f"s_cmp_ge_u32 s{sR}, 20"); e("s_cbranch_scc1 CLRY2"); a_y_pub(31); e("s_branch CLRY"); lab("CLRY2"); a_y2_pub(31); lab("CLRY")
ex("0xffff"); clr(24,2); clr(31,1)
ex(1); clr(25,2)
e("s_mov_b32 exec_lo, -1"); clr(26,1); ex(-1)
lab("CLRD")
e(f"v_and_b32 v24, 15, v{vL}"); e("v_cmp_eq_u32 vcc, 1, v24"); e(f"v_mov_b32 v25, {L_S}"); e(f"v_mov_b32 v26, {L_S+1024}"); e(f"v_cndmask_b32 v{vA}, v25, v26, vcc"); e(f"v_lshl_add_u32 v{vA}, v19, 4, v{vA}")
e("v_lshlrev_b32 v24, 6, v19"); e("v_lshl_add_u32 v24, v20, 4, v24"); e(f"v_add_u32 v24, {L_QB}, v24")
e("v_and_b32 v25, 1, v19"); e("v_lshlrev_b32 v25, 6, v25"); e("v_lshl_add_u32 v25, v20, 4, v25"); e(f"v_add_u32 v25, {L_QB+256}, v25")
e(f"v_mov_b32 v26, {L_ZERO}"); e("v_and_b32 v27, 2, v19")
for fi,t in ((0,0),(1,2),(3,1),(4,3)):
    e(f"v_cmp_eq_u32 vcc, {t}, v21"); e("s_nop 1"); e(f"v_cndmask_b32 v{vQA+fi}, v26, v24, vcc")
e("v_cmp_eq_u32 vcc, v27, v21"); e("v_add_u32 v27, 1, v27"); e("s_nop 0"); e(f"v_cndmask_b32 v{vQA+2}, v26, v25, vcc")
e("v_cmp_eq_u32 vcc, v27, v21"); e("s_nop 1"); e(f"v_cndmask_b32 v{vQA+5}, v26, v25, vcc")
e(f"v_and_b32 v24, 1, v{vL}"); e("v_lshlrev_b32 v24, 4, v24"); e("v_mov_b32 v25, 0xffff"); e("v_lshlrev_b32 v25, v24, v25"); e(f"v_bfe_u32 v24, v{vL}, 1, 2")
for t in range(4):
    e(f"v_cmp_eq_u32 vcc, {t}, v24"); e("s_nop 1"); e(f"v_cndmask_b32 v{vMK+t}, 0, v25, vcc")
e("v_cmp_gt_u32 vcc, 40, v0"); e("v_cmp_le_u32 s[60:61], 64, v0"); e("s_or_b64 vcc, vcc, s[60:61]"); e("v_mov_b32 v25, 0x3f803f80"); e("s_nop 0"); e("v_cndmask_b32 v25, 0, v25, vcc")
e("v_lshlrev_b32 v24, 2, v0"); e(f"v_add_u32 v24, {L_S+1024}, v24"); e("ds_write_b32 v24, v25")
e(f"v_mov_b32 v24, {L_ZERO}"); e("v_mov_b64 v[26:27], 0"); e("ds_write_b64 v24, v[26:27]"); e("ds_write_b64 v24, v[26:27] offset:8")
e(f"s_getreg_b32 s{sT0}, hwreg(HW_REG_XCC_ID)"); e(f"s_and_b32 s{sT0}, s{sT0}, 15"); e(f"s_mul_i32 s{sT1}, s{sT0}, s{sT0}"); e(f"s_lshl_b32 s{sT0}, s{sT0}, 8"); e(f"s_lshl_b32 s{sT1}, s{sT1}, 18"); e(f"s_add_u32 s{sADD}, s{sT0}, s{sT1}"); e(f"s_add_u32 s{sADD}, s{sADD}, 1")
kloads(KA,KB)
e("v_mov_b32 v80, v16"); e("v_mov_b32 v81, v17")
stamp(1)
e(f"s_waitcnt vmcnt({3*(KB-KA)})"); e("s_barrier")
e(f"s_cmp_lg_u32 s{sWv}, 3"); e("s_cbranch_scc1 NOAT")
e(f"v_mov_b32 v24, s{sADD}"); e(f"s_lshl_b32 s{sT0}, s{sX}, 2"); e("v_mov_b32 v25, 0"); ex(1)
e(f"buffer_atomic_add v24, v25, {S(SDBG)}, s{sT0} offen sc1"); ex(-1)
lab("NOAT")
QF=44; QAF=32; QD=16
def qprep():
    e(f"v_and_b32 v16, 15, v{vL}"); e(f"v_lshrrev_b32 v17, 4, v{vL}"); e("v_lshrrev_b32 v18, 2, v16"); e("v_and_b32 v16, 3, v16"); e("v_lshlrev_b32 v16, 3, v16")
    e(f"s_mul_i32 s{sT0}, s{sWv}, 96"); e(f"s_add_u32 s{sT0}, s{sT0}, {L_WQ}"); e(f"v_add_u32 v16, s{sT0}, v16"); e("v_mul_u32_u24 v18, 384, v18"); e("v_add_u32 v16, v16, v18")
    e("v_and_b32 v18, 1, v17"); e("v_mul_u32_u24 v17, 3072, v17"); e("v_mul_u32_u24 v18, 3072, v18"); e("v_add_u32 v17, v17, v16"); e("v_add_u32 v18, v18, v16")
    for tt in range(3):
        for ks in range(3):
            r=QF+4*(3*tt+ks)
            for hf in range(2): e(f"ds_read_b64_tr_b16 {V(r+2*hf,2)}, v{17 if ks<2 else 18} offset:{ks*12288+tt*32+hf*1536}")
    a_q_pub(14); a_qs_pub(15); a_xr_pub(28); a_rowlocal(29)
qprep()
e("s_branch QMID")
lab("LOOP")
qprep()
e(f"s_cmp_eq_u32 s{sWv}, 3"); e("s_cbranch_scc1 Y2OK")
e("v_min_u32 v20, 79, v29"); e(f"s_mul_i32 s{sT0}, s{sS}, 80"); e(f"v_add_u32 v20, s{sT0}, v20"); e("v_lshrrev_b32 v21, 4, v20"); e("v_and_b32 v20, 15, v20"); e("v_lshlrev_b32 v21, 10, v21"); e("v_lshl_add_u32 v21, v20, 2, v21")
e(f"v_lshrrev_b32 v20, 5, v{vL}"); e("v_lshl_add_u32 v21, v20, 9, v21"); e(f"v_add_u32 v21, {W_Y2}, v21")
e(f"s_mov_b32 s{sCNT}, 0")
lab("Y2P")
for j in range(4): e(f"buffer_load_dword v{22+j}, v21, {S(SW)}, s{sLB} offen offset:{128*j} sc1")
e("s_waitcnt vmcnt(0)")
e("v_add_f32 v22, v22, v23"); e("v_add_f32 v24, v24, v25"); e("v_add_f32 v30, v22, v24"); swapadd(30,31,32)
retry("Y2P","Y2OK",("v30","v30"))
stamp(12)
e(f"s_cmp_lg_u32 s{sLB}, 0"); e("s_cbranch_scc1 FINAL")
flush_stamps("A")
e(f"s_mov_b32 s{sLB}, {LS}")
lab("QMID")
stamp(2)
e(f"s_cmp_eq_u32 s{sWv}, 3"); e("s_cbranch_scc1 QX")
e("v_cvt_pk_bf16_f32 v30, v30, v30"); e("v_cmp_gt_u32 vcc, 80, v29"); e("v_lshlrev_b32 v20, 1, v29"); e(f"v_add_u32 v20, {L_S}, v20"); e("v_cndmask_b32 v30, 0, v30, vcc")
e("ds_write_b16 v20, v30")
e("v_and_b32 v30, 0xffff0000, v30"); e("s_and_b32 vcc_hi, vcc_hi, 0"); e("s_mov_b64 exec, vcc")
pub([f"buffer_store_dword v30, v28, {S(SW)}, s{sLB} offen"],True); ex(-1)
lab("QX")
e("s_waitcnt lgkmcnt(0)"); e("s_barrier")
for ks in range(3): e(f"ds_read_b128 {V(QAF+4*ks)}, v{vA} offset:{64*ks}")
e("s_waitcnt lgkmcnt(0)")
for tt in range(3):
    for ks in range(3): MF(V(QD+4*tt),V(QAF+4*ks),V(QF+4*(3*tt+ks)),"0" if ks==0 else V(QD+4*tt))
for ks in range(3): MF(V(QD+12),V(QAF+4*ks),V(QAF+4*ks),"0" if ks==0 else V(QD+12))
ex("0xffff"); e("s_nop 2")
pub([f"buffer_store_dwordx2 {V(QD+4*tt,2)}, v14, {S(SW)}, s{sLB} offen offset:{1024*tt}" for tt in range(3)],True)
e(f"s_cmp_lg_u32 s{sWv}, 3"); e("s_cbranch_scc1 NOQS"); ex(1); e("s_nop 4")
pub([f"buffer_store_dwordx2 {V(QD+12,2)}, v15, {S(SW)}, s{sLB} offen"],True)
lab("NOQS"); ex(-1)
stamp(3)
e(f"s_cmp_eq_u32 s{sFIRST}, 0"); e("s_cbranch_scc1 ENTRY")
e("v_mov_b32 v16, v80"); e("v_mov_b32 v17, v81")
kloads(KB,16)
e(f"v_lshrrev_b32 v24, 3, v{vL}"); e(f"v_and_b32 v25, 7, v{vL}"); e("v_mul_u32_u24 v26, 1280, v24"); e("v_lshl_add_u32 v26, v25, 4, v26")
e(f"s_cmp_ge_u32 s{sR}, 30"); e("s_cbranch_scc1 WOD")
e(f"s_mul_i32 s{sT0}, s{sX}, 768"); e(f"s_mul_i32 s{sT1}, s{sP}, 384"); e(f"s_add_u32 s{sT0}, s{sT0}, s{sT1}"); e(f"s_mul_i32 s{sT1}, s{sX}, 192"); e(f"s_cmp_ge_u32 s{sR}, 20"); e(f"s_cselect_b32 s{sT0}, s{sT1}, s{sT0}")
e(f"s_lshl_b32 s{sT1}, s{sWv}, 3"); e(f"s_add_u32 s{sT0}, s{sT0}, s{sT1}"); e(f"s_mul_i32 s{sT0}, s{sT0}, 1280"); e(f"s_lshl_b32 s{sT1}, s{sCG}, 7"); e(f"s_add_u32 s{sT0}, s{sT0}, s{sT1}")
e(f"s_lshl_b32 s{sT1}, s{sWv}, 10")
for k in range(12):
    if k==6: e(f"s_cmp_ge_u32 s{sR}, 20"); e("s_cbranch_scc1 WOD")
    e(f"s_add_u32 m0, s{sT1}, {L_WO+4096*k}"); e(f"s_add_u32 s{sT2}, s{sT0}, {k*32*1280}")
    e(f"buffer_load_dwordx4 v26, {S(SWO)}, s{sT2} offen nt lds")
lab("WOD")
stamp(13)
e(f"v_lshrrev_b32 v40, 4, v{vL}"); e(f"v_bfe_u32 v41, v{vL}, 3, 1"); e("v_lshl_add_u32 v40, v41, 2, v40"); e("v_mul_u32_u24 v40, 384, v40"); e(f"v_and_b32 v41, 7, v{vL}"); e("v_lshl_add_u32 v40, v41, 4, v40")
e("v_lshlrev_b32 v41, 2, v41")
e(f"buffer_load_dword v42, v41, {S(SDBG)}, 0 offen sc1")
vloads(0,8,40)
e("s_waitcnt vmcnt(24)"); e(f"s_mov_b32 s{sCNT}, 0")
lab("HSP")
e("v_and_b32 v43, 0xff, v42"); e("v_cmp_ne_u32 vcc, 32, v43"); e("s_cbranch_vccz HSOK")
e(f"buffer_load_dword v42, v41, {S(SDBG)}, 0 offen sc1"); e("s_waitcnt vmcnt(0)")
e(f"s_add_u32 s{sCNT}, s{sCNT}, 1"); e(f"s_cmp_lt_u32 s{sCNT}, 0x8000"); e("s_cbranch_scc1 HSP")
lab("HSOK")
stamp(14)
e(f"v_readlane_b32 s{sT0}, v42, s{sX}"); e(f"s_lshl_b32 s{sT1}, s{sADD}, 5"); e(f"s_cmp_eq_u32 s{sT0}, s{sT1}"); e(f"s_cselect_b32 s{sFAST}, 1, 0")
if os.environ.get("FORCESLOW"): e(f"s_mov_b32 s{sFAST}, 0")
e(f"v_lshrrev_b32 v42, 3, v{vL}"); e("v_mul_u32_u24 v42, 3072, v42"); e("v_lshl_add_u32 v42, v41, 2, v42")
lab("ENTRY")
e(f"s_mov_b32 s{sCNT}, 0")
e("v_lshrrev_b32 v14, 4, v0"); e("v_and_b32 v15, 15, v0"); e("v_lshlrev_b32 v14, 10, v14"); e("v_lshl_add_u32 v14, v15, 3, v14"); e(f"s_mul_i32 s{sT0}, s{sH}, 12288"); e(f"v_add_u32 v14, s{sT0}, v14")
e(f"v_and_b32 v15, 7, v{vL}"); e(f"s_lshl_b32 s{sT0}, s{sH}, 7"); e(f"s_add_u32 s{sT0}, s{sT0}, {W_QS}"); e(f"v_lshl_add_u32 v15, v15, 3, s{sT0}")
lab("ENP")
e(f"s_cmp_eq_u32 s{sWv}, 3"); e("s_cbranch_scc1 ENL")
for j in range(8): e(f"buffer_load_dwordx2 {V(16+2*j,2)}, v14, {S(SW)}, s{sLB} offen offset:{128*j} sc1")
e(f"buffer_load_dwordx2 {V(32,2)}, v15, {S(SW)}, s{sLB} offen sc1")
lab("ENL")
e(f"s_cmp_lg_u32 s{sFIRST}, 0"); e("s_cbranch_scc1 REST")
e("s_waitcnt vmcnt(0)")
lab("RESTD")
tail.append("REST:")
save=o; o=tail
vloads(8,16,40)
e(f"s_lshl_b32 s{sT0}, s{sRG}, 7"); e(f"s_lshl_b32 s{sT1}, s{sWv}, 3"); e(f"s_add_u32 s{sT0}, s{sT0}, s{sT1}"); e(f"s_mul_i32 s{sT0}, s{sT0}, 3072"); e(f"s_mul_i32 s{sT1}, s{sX}, 384"); e(f"s_add_u32 s{sT0}, s{sT0}, s{sT1}"); e(f"s_lshl_b32 s{sT1}, s{sCGRP}, 7"); e(f"s_add_u32 s{sT0}, s{sT0}, s{sT1}")
e(f"s_lshl_b32 s{sT1}, s{sWv}, 10")
for k in range(4):
    e(f"s_add_u32 m0, s{sT1}, {L_W13+4096*k}"); e(f"s_add_u32 s{sT2}, s{sT0}, {k*32*3072}")
    e(f"buffer_load_dwordx4 v42, {S(SW13)}, s{sT2} offen nt lds")
e(f"s_mov_b32 s{sFIRST}, 0"); e("s_waitcnt vmcnt(28)"); e("s_branch RESTD")
o=save
e(f"s_cmp_eq_u32 s{sWv}, 3"); e("s_cbranch_scc1 ENOK2")
def lnstats(sx):
    r=[]
    for pat in ("quad_perm:[1,0,3,2]","quad_perm:[2,3,0,1]","row_half_mirror"):
        r.append([f"v_add_f32_dpp v{sx}, v{sx}, v{sx} {pat}{DPP}", f"v_add_f32_dpp v{sx+1}, v{sx+1}, v{sx+1} {pat}{DPP}"])
    return r
def lnfin(sx):
    e(f"v_mul_f32 v{sx+1}, 0x3acccccd, v{sx+1}"); e(f"v_mov_b32 v{vTMP}, 0x3727c5ac"); e(f"v_fmac_f32 v{vTMP}, 0x3acccccd, v{sx}"); e(f"v_fma_f32 v{sx}, -v{sx+1}, v{sx+1}, v{vTMP}"); e(f"v_rsq_f32 v{sx}, v{sx}")
st=lnstats(32)
for x in st[0]: e(x)
e("v_pk_add_f32 v[16:17], v[16:17], v[18:19]"); e("v_pk_add_f32 v[20:21], v[20:21], v[22:23]")
for x in st[1]: e(x)
e("v_pk_add_f32 v[24:25], v[24:25], v[26:27]"); e("v_pk_add_f32 v[28:29], v[28:29], v[30:31]")
for x in st[2]: e(x)
e("v_pk_add_f32 v[16:17], v[16:17], v[20:21]"); e("v_pk_add_f32 v[24:25], v[24:25], v[28:29]")
lnfin(32)
e("v_pk_add_f32 v[16:17], v[16:17], v[24:25]")
e("v_mul_f32 v32, 0x3dd53b94, v32"); e("v_fma_f32 v16, -v33, v17, v16"); e("v_mul_f32 v16, v16, v32")
retry("ENP","ENOK",("v16","v16"))
e("v_cvt_pk_bf16_f32 v16, v16, v16"); e("v_lshlrev_b32 v17, 1, v0"); e(f"v_add_u32 v17, {L_QB}, v17"); e("ds_write_b16 v17, v16")
lab("ENOK2")
e("s_waitcnt lgkmcnt(0)"); e("s_barrier")
stamp(4)
QFR=16
for f in range(6): e(f"ds_read_b128 {V(QFR+4*f)}, v{vQA+f}")
a_o_pub(14)
e(f"v_and_b32 v15, 7, v{vL}"); e("v_lshlrev_b32 v15, 5, v15"); e(f"v_bfe_u32 v61, v{vL}, 4, 1"); e("v_lshl_add_u32 v15, v61, 4, v15"); e(f"v_lshrrev_b32 v61, 5, v{vL}"); e("v_mul_u32_u24 v61, 768, v61"); e("v_add_u32 v15, v15, v61")
e(f"s_mul_i32 s{sT0}, s{sWv}, 1536"); e(f"s_add_u32 s{sT0}, s{sT0}, {L_OACC}"); e(f"v_add_u32 v15, s{sT0}, v15")
e(f"s_mul_i32 s{sT0}, s{sWv}, 192"); e(f"s_add_u32 s{sT0}, s{sT0}, {L_OACC}"); e(f"v_min_u32 v60, 23, v{vL}"); e(f"v_lshl_add_u32 v60, v60, 3, s{sT0}")
e("s_waitcnt lgkmcnt(0)")
e(f"s_cmp_lg_u32 s{sLB}, 0"); e("s_cbranch_scc1 NOBO")
def tr128(dst):
    e(f"v_and_b32 v{dst}, 3, v{vL}"); e(f"v_lshlrev_b32 v{dst}, 3, v{dst}"); e(f"v_bfe_u32 v{vTMP}, v{vL}, 2, 2"); e(f"v_lshl_add_u32 v{dst}, v{vTMP}, 7, v{dst}"); e(f"v_lshrrev_b32 v{vTMP}, 4, v{vL}"); e(f"v_lshl_add_u32 v{dst}, v{vTMP}, 10, v{dst}")
    e(f"s_lshl_b32 s{sT0}, s{sWv}, 5"); e(f"v_add_u32 v{dst}, s{sT0}, v{dst}")
tr128(61)
for ks in range(12):
    for hf in range(2): e(f"ds_read_b64_tr_b16 {V(BO+4*ks+2*hf,2)}, v61 offset:{L_WO+4096*ks+512*hf}")
lab("NOBO")
DB=[40,44,48]; SC=52; MX=62
def red(T):
    d=DB[T%3]; s=SC+T
    r=[f"v_mov_b32_dpp v{s}, v{d} quad_perm:[0,0,0,0]{DPP}"]
    for b in (1,2,3): r.append(f"v_add_f32_dpp v{s}, v{d+b}, v{s} quad_perm:[{b},{b},{b},{b}]{DPP}")
    r.append(f"v_mov_b32 v{MX}, v{s}" if T==0 else f"v_max_f32 v{MX}, v{MX}, v{s}")
    return r
for T in range(8):
    fill=red(T-2) if T>=2 else []
    d=V(DB[T%3])
    for f in range(6):
        MF(d,kreg(6*T+f),V(QFR+4*f),"0" if f==0 else d)
        if f>=1 and fill: e(fill.pop(0))
for x in red(6): e(x)
e("s_nop 2")
for x in red(7): e(x)
e("s_nop 1"); e(f"v_max_f32_dpp v{MX}, v{MX}, v{MX} row_ror:4{DPP}"); e("s_nop 1"); e(f"v_max_f32_dpp v{MX}, v{MX}, v{MX} row_ror:8{DPP}")
swapadd(MX,63,16,"max"); swapadd(MX,63,32,"max")
stamp(5)
AB=[16,24]; ACC=32; SUM=63; PK=44
def prep(T):
    s=SC+T; a=AB[T%2]
    r=[f"v_sub_f32 v{s}, v{s}, v{MX}", f"v_exp_f32 v{s}, v{s}", "s_nop 0", f"v_cvt_pk_bf16_f32 v{PK}, v{s}, v{s}",
       f"v_and_b32 v{a}, v{PK}, v{vMK}", f"v_and_b32 v{a+1}, v{PK}, v{vMK+1}",
       f"v_and_b32_dpp v{a+2}, v{PK}, v{vMK+2} row_shr:4{DPP} bound_ctrl:0", f"v_and_b32_dpp v{a+3}, v{PK}, v{vMK+3} row_shr:4{DPP} bound_ctrl:0",
       f"v_and_b32_dpp v{a+4}, v{PK}, v{vMK} row_shl:4{DPP} bound_ctrl:0", f"v_and_b32_dpp v{a+5}, v{PK}, v{vMK+1} row_shl:4{DPP} bound_ctrl:0",
       f"v_and_b32 v{a+6}, v{PK}, v{vMK+2}", f"v_and_b32 v{a+7}, v{PK}, v{vMK+3}",
       f"v_mov_b32 v{SUM}, v{s}" if T==0 else f"v_add_f32 v{SUM}, v{SUM}, v{s}"]
    return r
for x in prep(0): e(x)
for T in range(8):
    if T<7: fill=prep(T+1); fill[2:3]=[]
    else:
        fill=["s_nop 0", f"v_add_f32_dpp v{SUM}, v{SUM}, v{SUM} row_ror:4{DPP}", "s_nop 0", "s_nop 0", f"v_add_f32_dpp v{SUM}, v{SUM}, v{SUM} row_ror:8{DPP}",
              f"v_mov_b32 v{PK}, v{SUM}", "s_nop 0", f"v_permlane16_swap_b32 v{SUM}, v{PK}", f"v_add_f32 v{SUM}, v{SUM}, v{PK}",
              f"v_mov_b32 v{PK}, v{SUM}", "s_nop 0", f"v_permlane32_swap_b32 v{SUM}, v{PK}"]
    e(f"s_waitcnt vmcnt({48-6*(T+1)+4})")
    for f in range(6):
        a=AB[T%2]+4*(f//3); d=V(ACC+4*(f%3))
        MF(d,V(a),vreg(6*T+f),"0" if (T==0 and f<3) else d)
        for _ in range(2):
            if fill: e(fill.pop(0))
    assert not fill
e(f"v_add_f32 v{SUM}, v{SUM}, v{PK}")
stamp(6)
e(f"s_lshl_b32 s{sT0}, s{sWv}, 3"); e(f"s_add_u32 s{sT0}, s{sT0}, {L_ML}"); e(f"v_mov_b32 v61, s{sT0}"); e(f"ds_write_b64 v61, v[{MX}:{MX+1}]")
e("s_mov_b32 exec_lo, 0x00ff00ff"); e("s_mov_b32 exec_hi, 0xff00ff00"); e("s_nop 1")
for sg in range(3): e(f"ds_write_b128 v15, {V(ACC+4*sg)} offset:{256*sg}")
ex(-1); e(f"v_mov_b32 v61, {L_ML}")
e("s_waitcnt lgkmcnt(0)"); e("s_barrier")
e("ds_read_b128 v[16:19], v61"); e("ds_read_b128 v[20:23], v61 offset:16")
for k in range(8): e(f"ds_read_b64 {V(24+2*k,2)}, v60 offset:{768*k}")
e("s_waitcnt lgkmcnt(8)" if not DBG else "s_waitcnt lgkmcnt(0)")
e("v_max_f32 v40, v16, v18"); e("v_max3_f32 v40, v40, v20, v22")
for w in range(4): e(f"v_sub_f32 v{16+2*w}, v{16+2*w}, v40")
for w in range(4): e(f"v_exp_f32 v{16+2*w}, v{16+2*w}")
e("v_mul_f32 v41, v16, v17")
for w in range(1,4): e(f"v_fmac_f32 v41, v{16+2*w}, v{17+2*w}")
e("v_rcp_f32 v42, v41"); e("v_log_f32 v43, v41")
e("s_waitcnt lgkmcnt(0)")
for w in range(4): e(f"v_pk_add_f32 {V(24+4*w,2)}, {V(24+4*w,2)}, {V(26+4*w,2)}")
e("v_pk_mul_f32 v[24:25], v[24:25], v[16:17] op_sel_hi:[1,0]")
for w in range(1,4): e(f"v_pk_fma_f32 v[24:25], {V(24+4*w,2)}, {V(16+2*w,2)}, v[24:25] op_sel_hi:[1,0,1]")
e("v_pk_mul_f32 v[24:25], v[24:25], v[42:43] op_sel_hi:[1,0]"); e("v_add_f32 v43, v43, v40"); e(f"v_cmp_eq_u32 vcc, 24, v{vL}")
e("v_cvt_pk_bf16_f32 v24, v24, v25"); ex("0x1ffffff"); e("v_cndmask_b32 v24, v24, v43, vcc")
pub([f"buffer_store_dword v24, v14, {S(SW)}, s{sLB} offen"],True); ex(-1)
stamp(7)
e(f"s_cmp_ge_u32 s{sR}, 20"); e("s_cbranch_scc1 WOX")
e(f"v_and_b32 v56, 15, v{vL}"); e(f"v_lshrrev_b32 v57, 4, v{vL}"); e("v_mul_u32_u24 v58, 384, v56"); e("v_lshl_add_u32 v58, v57, 4, v58")
e(f"s_lshl_b32 s{sT0}, s{sX}, 1"); e(f"s_add_u32 s{sT0}, s{sT0}, s{sP}"); e(f"s_mul_i32 s{sT1}, s{sT0}, 6144"); e(f"s_add_u32 s{sT1}, s{sT1}, {W_O}"); e(f"v_add_u32 v58, s{sT1}, v58")
e(f"s_lshl_b32 s{sT1}, s{sT0}, 8"); e(f"s_add_u32 s{sT1}, s{sT1}, {W_LSE}"); e("v_lshrrev_b32 v59, 1, v57"); e(f"v_lshl_add_u32 v59, v59, 7, s{sT1}"); e("v_and_b32 v60, 1, v57"); e("v_lshl_add_u32 v59, v60, 4, v59"); e("v_xor_b32 v60, 16, v59")
e(f"s_mul_i32 s{sT1}, s{sT0}, 5120"); e(f"s_lshl_b32 s{sT2}, s{sCG}, 8"); e(f"s_add_u32 s{sT1}, s{sT1}, s{sT2}"); e(f"s_lshl_b32 s{sT2}, s{sWv}, 6"); e(f"s_add_u32 s{sT1}, s{sT1}, s{sT2}"); e(f"s_add_u32 s{sT1}, s{sT1}, {W_XR}"); e(f"v_lshl_add_u32 v61, v56, 2, s{sT1}")
a_y_pub(14)
e(f"v_cmp_gt_u32 s[60:61], 32, v{vL}")
e(f"s_mov_b32 s{sCNT}, 0")
lab("WOP")
e(f"buffer_load_dwordx4 {V(40)}, v59, {S(SW)}, s{sLB} offen sc1"); e(f"buffer_load_dwordx4 {V(44)}, v60, {S(SW)}, s{sLB} offen sc1")
for ks in range(6): e(f"buffer_load_dwordx4 {V(16+4*ks)}, v58, {S(SW)}, s{sLB} offen offset:{64*ks} sc1")
e(f"buffer_load_dword v62, v61, {S(SW)}, s{sLB} offen sc1")
e("s_waitcnt vmcnt(0)")
fill=["v_max3_f32 v63, v40, v41, v42","v_max3_f32 v63, v63, v43, v44","v_max3_f32 v63, v63, v45, v46","v_max_f32 v63, v63, v47"]
fill+=[f"v_sub_f32 v{40+k}, v{40+k}, v63" for k in range(8)]+[f"v_exp_f32 v{40+k}, v{40+k}" for k in range(8)]
fill+=["v_add_f32 v63, v40, v41","v_add_f32 v44, v44, v45","v_add_f32 v46, v46, v47","v_add_f32 v45, v42, v43","v_add_f32 v44, v44, v46","v_add_f32 v63, v63, v45","v_add_f32 v63, v63, v44","v_rcp_f32 v63, v63"]
for ks in range(6):
    for hd in range(2):
        d=V(48+4*hd); MF(d,V(16+4*ks),V(BO+24*hd+4*ks),"0" if ks==0 else d)
        for _ in range(2):
            if fill: e(fill.pop(0))
for x in fill: e(x)
e("s_nop 3")
for i in range(4): e(f"v_cndmask_b32 v{48+i}, v{52+i}, v{48+i}, s[60:61]")
e("v_mul_f32 v48, v48, v40")
for i in range(1,4): e(f"v_fmac_f32 v48, v{48+i}, v{40+i}")
e("v_mul_f32 v48, v48, v63")
swapadd(48,49,16); swapadd(48,49,32)
e(f"v_fmac_f32 v48, s{sFLG}, v62")
retry("WOP","WOOK",("v48","v48"))
ex("0xffff"); pub([f"buffer_store_dword v48, v14, {S(SW)}, s{sLB} offen"],False); ex(-1)
lab("WOX")
stamp(8)
e(f"s_cmp_ge_u32 s{sR}, 30"); e("s_cbranch_scc1 STX")
e(f"s_cmp_lg_u32 s{sLB}, 0"); e("s_cbranch_scc1 NOW13"); e("s_waitcnt vmcnt(1)"); e("s_barrier"); lab("NOW13")
BF=64
tr128(61)
for ks in range(4):
    for hf in range(2): e(f"ds_read_b64_tr_b16 {V(BF+4*ks+2*hf,2)}, v61 offset:{L_W13+4096*ks+512*hf}")
a_g_pub(14); a_gs_pub(15); a_x1_pub(56); a_rowlocal(57); e("v_lshlrev_b32 v57, 1, v57"); e(f"v_add_u32 v57, {L_S+256}, v57")
e(f"v_bfe_u32 v58, v{vL}, 4, 1"); e("v_lshlrev_b32 v58, 11, v58"); e(f"v_lshrrev_b32 v59, 5, v{vL}"); e("v_lshl_add_u32 v58, v59, 10, v58"); e(f"v_and_b32 v59, 15, v{vL}"); e("v_lshl_add_u32 v58, v59, 2, v58")
e(f"s_lshl_b32 s{sT0}, s{sRG}, 14"); e(f"s_lshl_b32 s{sT1}, s{sWv}, 12"); e(f"s_add_u32 s{sT0}, s{sT0}, s{sT1}"); e(f"s_add_u32 s{sT0}, s{sT0}, {W_Y}"); e(f"v_add_u32 v58, s{sT0}, v58")
e(f"s_mov_b32 s{sCNT}, 0")
lab("F1P")
for j in range(8): e(f"buffer_load_dword v{16+j}, v58, {S(SW)}, s{sLB} offen offset:{128*j} sc1")
e("s_waitcnt vmcnt(0)")
e("v_pk_add_f32 v[16:17], v[16:17], v[18:19]"); e("v_pk_add_f32 v[20:21], v[20:21], v[22:23]"); e("v_pk_add_f32 v[16:17], v[16:17], v[20:21]"); e("v_add_f32 v16, v16, v17"); swapadd(16,17,32)
retry("F1P","F1OK",("v16","v16"))
stamp(9)
e("v_cvt_pk_bf16_f32 v16, v16, v16"); e("ds_write_b16 v57, v16"); e("v_and_b32 v16, 0xffff0000, v16")
e("s_mov_b32 exec_hi, 0"); pub([f"buffer_store_dword v16, v56, {S(SW)}, s{sLB} offen"],True); ex(-1)
e("s_waitcnt lgkmcnt(0)"); e("s_barrier")
for ks in range(4): e(f"ds_read_b128 {V(20+4*ks)}, v{vA} offset:{256+64*ks}")
e("s_waitcnt lgkmcnt(0)")
for ks in range(4): MF(V(40),V(20+4*ks),V(BF+4*ks),"0" if ks==0 else V(40))
e(f"s_cmp_lg_u32 s{sWv}, 3"); e("s_cbranch_scc1 NOGS0")
for ks in range(4): MF(V(44),V(20+4*ks),V(20+4*ks),"0" if ks==0 else V(44))
lab("NOGS0")
ex("0xffff"); e("s_nop 3")
pub([f"buffer_store_dwordx2 {V(40,2)}, v14, {S(SW)}, s{sLB} offen"],True)
e(f"s_cmp_lg_u32 s{sWv}, 3"); e("s_cbranch_scc1 NOGS"); ex(1)
pub([f"buffer_store_dwordx2 {V(44,2)}, v15, {S(SW)}, s{sLB} offen"],True)
lab("NOGS"); ex(-1)
stamp(10)
e(f"s_cmp_lt_u32 s{sR}, 20"); e("s_cbranch_scc1 STX")
a_y2_pub(14)
e("v_lshrrev_b32 v56, 4, v0"); e("v_min_u32 v56, 11, v56"); e("v_mul_u32_u24 v56, 1280, v56"); e("v_and_b32 v57, 15, v0"); e("v_lshl_add_u32 v56, v57, 3, v56"); e(f"s_mul_i32 s{sT0}, s{sX}, 15360"); e(f"s_add_u32 s{sT0}, s{sT0}, {W_G}"); e(f"v_add_u32 v56, s{sT0}, v56")
e(f"v_and_b32 v58, 7, v{vL}"); e("v_cmp_gt_u32 vcc, 5, v58"); e("v_min_u32 v58, 4, v58"); e(f"s_lshl_b32 s{sT0}, s{sX}, 8"); e(f"s_add_u32 s{sT0}, s{sT0}, {W_GS}"); e(f"v_lshl_add_u32 v58, v58, 3, s{sT0}"); e("v_cndmask_b32 v60, 0, 1.0, vcc")
e(f"s_lshl_b32 s{sT0}, s{sX}, 14"); e(f"s_lshl_b32 s{sT1}, s{sCG}, 8"); e(f"s_add_u32 s{sT0}, s{sT0}, s{sT1}"); e(f"s_lshl_b32 s{sT1}, s{sWv}, 6"); e(f"s_add_u32 s{sT0}, s{sT0}, s{sT1}"); e(f"s_add_u32 s{sT0}, s{sT0}, {W_X1}"); e(f"v_lshl_add_u32 v59, v57, 2, s{sT0}")
e("v_lshlrev_b32 v57, 1, v0"); e(f"v_add_u32 v57, {L_S+512}, v57")
e(f"s_mov_b32 s{sCNT}, 0")
lab("W2P")
e(f"buffer_load_dwordx2 {V(36,2)}, v58, {S(SW)}, s{sLB} offen sc1")
for j in range(10): e(f"buffer_load_dwordx2 {V(16+2*j,2)}, v56, {S(SW)}, s{sLB} offen offset:{128*j} sc1")
e(f"buffer_load_dword v62, v59, {S(SW)}, s{sLB} offen sc1")
e("s_waitcnt vmcnt(0)")
e("v_pk_mul_f32 v[36:37], v[36:37], v[60:61] op_sel_hi:[1,0]")
e("v_pk_add_f32 v[16:17], v[16:17], v[18:19]"); e("v_pk_add_f32 v[26:27], v[26:27], v[28:29]")
st=lnstats(36)
for x in st[0]: e(x)
e("v_pk_add_f32 v[20:21], v[20:21], v[22:23]"); e("v_pk_add_f32 v[30:31], v[30:31], v[32:33]")
for x in st[1]: e(x)
e("v_pk_add_f32 v[16:17], v[16:17], v[24:25]"); e("v_pk_add_f32 v[26:27], v[26:27], v[34:35]")
for x in st[2]: e(x)
e("v_pk_add_f32 v[16:17], v[16:17], v[20:21]"); e("v_pk_add_f32 v[26:27], v[26:27], v[30:31]")
lnfin(36)
e("v_fma_f32 v16, -v37, v17, v16"); e("v_fma_f32 v26, -v37, v27, v26"); e("v_mul_f32 v16, v16, v36"); e("v_mul_f32 v26, v26, v36")
e("v_mul_f32 v17, 0xbfb8aa3b, v16"); e("v_exp_f32 v17, v17"); e("v_mul_f32 v16, v16, v26"); e("v_add_f32 v17, 1.0, v17"); e("v_rcp_f32 v17, v17"); e("s_nop 0"); e("v_mul_f32 v16, v16, v17")
retry("W2P","W2OK",("v16","v62"))
e("v_cvt_pk_bf16_f32 v16, v16, v16"); e("ds_write_b16 v57, v16")
e("s_waitcnt lgkmcnt(0)"); e("s_barrier")
for ks in range(6): e(f"ds_read_b128 {V(16+4*ks)}, v{vA} offset:{512+64*ks}")
e("s_waitcnt lgkmcnt(0)")
for ks in range(6): MF(V(40),V(16+4*ks),V(BO+4*ks),"0" if ks==0 else V(40))
ex("0xffff"); e("s_nop 6"); e(f"v_fmac_f32 v40, s{sFLG}, v62")
pub([f"buffer_store_dword v40, v14, {S(SW)}, s{sLB} offen"],False); ex(-1)
lab("STX")
stamp(11)
e(f"s_cmp_eq_u32 s{sLB}, 0"); e("s_cbranch_scc1 LOOP")
e(f"s_and_b32 s{sT0}, s2, 0xc7"); e(f"s_cmp_eq_u32 s{sT0}, 0"); e("s_cbranch_scc1 LOOP")
flush_stamps("B")
e("s_endpgm")
lab("FINAL")
e(f"s_cmp_eq_u32 s{sWv}, 3"); e("s_cbranch_scc1 FINX")
e("v_cvt_pk_bf16_f32 v30, v30, v30"); e("v_cmp_gt_u32 vcc, 80, v29"); e("v_lshlrev_b32 v20, 1, v29"); e(f"s_mul_i32 s{sT0}, s{sS}, 160"); e("s_and_b32 vcc_hi, vcc_hi, 0"); e("s_mov_b64 exec, vcc")
e(f"buffer_store_short v30, v20, {S(SOUT)}, s{sT0} offen"); ex(-1)
lab("FINX")
if os.environ.get("SPIN"):
    lab("SPINL"); e("s_memrealtime s[96:97]"); e("s_waitcnt lgkmcnt(0)"); e("s_sub_u32 s96, s96, s98"); e(f"s_cmp_lt_u32 s96, {os.environ['SPIN']}"); e("s_cbranch_scc1 SPINL")
flush_stamps("C")
lab("DONE")
e("s_endpgm")
o+=tail
o.append('''.section .rodata,"a"
.p2align 6
.amdhsa_kernel %s_kernel
  .amdhsa_next_free_vgpr 512
  .amdhsa_next_free_sgpr 102
  .amdhsa_accum_offset 256
  .amdhsa_group_segment_fixed_size 0
  .amdhsa_kernarg_size 96
  .amdhsa_user_sgpr_count 2
  .amdhsa_user_sgpr_kernarg_segment_ptr 1
  .amdhsa_system_sgpr_workgroup_id_x 1
.end_amdhsa_kernel''' % NAME)
src="\n".join(o)+"\n"
for m in re.finditer(r"buffer_\S+ .*offset:(\d+)",src): assert int(m.group(1))<4096, m.group(0)
for m in re.finditer(r"ds_\S+ .*offset:(\d+)",src): assert int(m.group(1))<65536, m.group(0)
assert all((c*52)>>8==c//5 for c in range(15))
open(OUT,"w").write(src)
print("lds",LDSSZ)
```

```python
import os, sys, re
NAME="interleave_layers__sliding_block_cached__glu_gated_swiglu__decode"
def P(k,d): return int(os.environ.get(k,str(d)))
DBG=P("DBG",0); OUT=os.environ.get("OUT",f"/code/{NAME}.s")
SLEEP=P("SLEEP",1); SLEEPI=P("SLEEPI",-1)
o=[]; tail=[]
def e(s): o.append("    "+s)
def lab(s): o.append(s+":")
def cm(s): o.append("    ; "+s)
class Tail:
    def __enter__(s):
        global o; s.sv=o; o=tail
    def __exit__(s,*a):
        global o; o=s.sv
L_WO=0; L_W13=49152; L_WQ=65536; L_S=L_WQ+30720
L_QB=L_S+2048; L_ML=L_QB+448; L_OACC=L_QB+512; L_RED=L_OACC+6144; L_ZERO=L_RED+4096; L_FAST=L_QB+480; L_CSP=L_ZERO+512; L_TAB=L_CSP+768; LDSSZ=L_TAB+8*4096
W_Y=0; W_Y2=81920; W_XR=131072; W_X1=W_XR+2560; W_GB=W_XR+5120; W_EW=W_Y2+32768+4096
I_O=0; I_G=12288; I_LSE=19968; I_GS=20224; C_G=20480; I_Q=20480; I_QS=I_Q+24576
XS0=28160; XS1=I_QS+256
LS=0x60000
assert W_GB+8*XS0<=256*1536<=LS and LS+W_GB+8*XS1<=0x110000 and XS0%128==0 and XS1%128==0
W_Q0=0x110000; W_FL=0x150000; W_QC=0x160000; W_PRB=0x1C0000
OOB=0x70000000
SK,SV,SW,SWQ,SWO,SW13,SX,SOUT,SDBG=8,12,16,20,24,28,32,36,40
sWv,sX,sR,sH,sS,sLB,sFAST,sCNT=44,45,46,47,48,49,50,51
sT0,sT1,sT2,sKV,sP,sCG,sMAT,sCGRP,sRG,sF,sADD,sFIRST,sHL=52,53,54,55,56,57,58,59,3,4,5,6,7
sIB=62
STB=64
def srd(d,lo,nbytes):
    e(f"s_mov_b32 s{d}, s{lo}"); e(f"s_and_b32 s{d+1}, s{lo+1}, 0xffff")
    e(f"s_mov_b32 s{d+2}, {nbytes}"); e(f"s_mov_b32 s{d+3}, 0x20000")
def S(d): return f"s[{d}:{d+3}]"
def V(b,n=4): return f"v[{b}:{b+n-1}]" if n>1 else f"v{b}"
NST=16
SPE=P("SPE",-1); spn=[0]
def early(i):
    if DBG and P("EARLY",0): e(f"s_memrealtime s[{STB+2*i}:{STB+2*i+1}]")
def stamp(i):
    if P("EARLY",0) and i in (4,5,6,8,9,10,11): return
    if DBG: e(f"s_mem{'' if P('CYC',0) else 'real'}time s[{STB+2*i}:{STB+2*i+1}]")
    if SPE==i or SPE==i+16:
        spn[0]+=1; e(f"s_cmp_{'lg' if SPE<16 else 'eq'}_u32 s{sLB}, 0"); e(f"s_cbranch_scc1 SPE{spn[0]}"); e("s_memrealtime s[92:93]"); lab(f"SPE{spn[0]}")
FINE=os.environ.get("FINE","")
def fine(tag,i):
    if DBG and FINE==tag: stamp(i)
def finecnt(tag):
    if DBG and FINE==tag: e(f"s_add_u32 s{STB+2}, s{STB}, s{sCNT}")
def flush_stamps(tag,idx):
    if not DBG: return
    e("s_waitcnt lgkmcnt(0)")
    e(f"s_cmp_lg_u32 s{sWv}, {P('DBGW',0)}"); e(f"s_cbranch_scc1 NOFL{tag}")
    e(f"s_lshl_b32 s{sT0}, s2, 8"); e(f"s_add_u32 s{sT0}, s{sT0}, {0x40000000+64*idx}")
    e("v_mov_b32 v27, 0"); e("s_mov_b64 exec, 1")
    for k in range(NST):
        e(f"v_mov_b32 v26, s{STB+2*k}"); e(f"buffer_store_dword v26, v27, {S(SW)}, s{sT0} offen offset:{4*k}")
    e("s_mov_b64 exec, -1")
    lab(f"NOFL{tag}")
vL,vA=1,2
vQA=3; vMK=5; vIDX=7; vCSQ=13; sNON=101; sKP=96; sSTR=97; sNR=0; vTB=12; sFAR,sNEAR=1,99; sIF,sIS,sLF,sLS_=32,33,34,35; BO=80; vCSG,vCSU=126,127
def kpair(i): return f"a[{8*i}:{8*i+7}]"
def kreg(g,sg): b=8*((g>>1)*3+sg)+4*(g&1); return f"a[{b}:{b+3}]"
def vbase(i): return ("a",192+8*i) if i<8 else ("v",128+8*(i-8))
def vpair(i): t,b=vbase(i); return f"{t}[{b}:{b+7}]"
def vreg(R,g2,z,sg): t,b=vbase(R*6+z*3+sg); b+=4*g2; return f"{t}[{b}:{b+3}]"
def SM(d,a,b,ab): e(f"v_smfmac_f32_16x16x64_bf16 {d}, {a}, {b}, v{vIDX}"+(" abid:1" if ab else ""))
def qperm(dst,src,tmp):
    e(f"v_and_b32 v{dst}, 0xe1, v{src}"); e(f"v_lshlrev_b32 v{dst}, 1, v{dst}")
    for sb,db in ((4,3),(3,4),(2,2),(1,5)):
        e(f"v_bfe_u32 v{tmp}, v{src}, {sb}, 1"); e(f"v_lshl_add_u32 v{dst}, v{tmp}, {db}, v{dst}")
    e(f"v_add_u32 v{dst}, {L_QB}, v{dst}")
DPP=" row_mask:0xf bank_mask:0xf"
def pub(data,addr,base,imm=0,w=1):
    f,s_={"I":(sIF,sIS),"L":(sLF,sLS_)}.get(base,base)
    op={1:"dword",2:"dwordx2",4:"dwordx4"}[w]
    return (f"buffer_store_{op} {V(data,w)}, v{addr}, {S(SW)}, s{f} offen offset:{imm}", f"buffer_store_{op} {V(data,w)}, v{addr}, {S(SW)}, s{s_} offen offset:{imm} sc1")
pid=[0]; slow=[]
def pubs(l,st=None):
    for a,b in l: e(a)
    if st is not None: stamp(st)
    pid[0]+=1
    e(f"s_cmp_eq_u32 s{sFAST}, 0"); e(f"s_cbranch_scc1 SLOW{pid[0]}"); lab(f"PUBD{pid[0]}")
    slow.append(f"SLOW{pid[0]}:")
    for a,b in l: slow.append("    "+b)
    slow.append(f"    s_branch PUBD{pid[0]}")
def fs(f,s_,src):
    e(f"s_cmp_lg_u32 s{sFAST}, 0"); e(f"s_cselect_b32 s{f}, s{src}, 1610612736"); e(f"s_cselect_b32 s{s_}, 1610612736, s{src}")
def bases():
    fs(sIF,sIS,sIB); fs(sLF,sLS_,sLB); e(f"s_add_u32 s{sNEAR}, s{sLB}, s{sNR}"); e(f"s_xor_b32 s{sFAR}, s{sNEAR}, 8192")
tm=[]
def again(lbl,slp):
    e(f"s_add_u32 s{sCNT}, s{sCNT}, 1")
    if slp>=0: e(f"s_sleep {slp}")
    e(f"s_cmp_lt_u32 s{sCNT}, 0x40000"); e(f"s_cbranch_scc1 {lbl}")
    if P("TMO",0):
        tm.append(lbl); e(f"s_lshr_b32 s{sCNT}, s{sLB}, 12"); e(f"s_add_u32 s{sCNT}, s{sCNT}, {32+4*len(tm)}"); e(f"v_mov_b32 v13, s{sCNT}"); e(f"s_lshl_b32 s{sCNT}, s2, 8"); e(f"s_add_u32 s{sCNT}, s{sCNT}, s{sWv}"); e(f"s_add_u32 s{sCNT}, s{sCNT}, 0x10000"); e(f"v_mov_b32 v79, s{sCNT}")
        e(f"buffer_store_dword v79, v13, {S(SDBG)}, 0 offen")
def retry(lbl, okl, chk, slp):
    e(f"v_cmp_u_f32 vcc, {chk[0]}, {chk[1]}")
    e(f"s_cbranch_vccz {okl}")
    again(lbl,slp)
    lab(okl)
def gate(k,d=0):
    g=P(k,d)
    if g: e(f"s_sleep {g}")
def sc(dst,terms,const=0):
    first=True
    for r,m in terms:
        t=dst if first else sT2
        if m&(m-1)==0: e(f"s_lshl_b32 s{t}, s{r}, {m.bit_length()-1}")
        else: e(f"s_mul_i32 s{t}, s{r}, {m}")
        if not first: e(f"s_add_u32 s{dst}, s{dst}, s{sT2}")
        first=False
    if const: e(f"s_add_u32 s{dst}, s{dst}, {const}")
def a_rowlocal(dst):
    e(f"v_and_b32 v{dst}, 31, v{vL}"); e(f"v_lshl_add_u32 v{dst}, s{sWv}, 5, v{dst}")
def ex(mask): e(f"s_mov_b64 exec, {mask}")
def fail(cond,lbl,slp,pre=(),post=()):
    e(f"s_cbranch_{cond} AG{lbl}"); lab(f"OK{lbl}")
    with Tail():
        lab(f"AG{lbl}")
        for x in pre: e(x)
        again(lbl,slp)
        for x in post: e(x)
        e(f"s_branch OK{lbl}")
def swapadd(v,t,kind,op="add"):
    e(f"v_mov_b32 v{t}, v{v}"); e("s_nop 1"); e(f"v_permlane{kind}_swap_b32 v{v}, v{t}"); e(f"v_{op}_f32 v{v}, v{v}, v{t}")
def MF(d,a,b,c): e(f"v_mfma_f32_16x16x32_bf16 {d}, {a}, {b}, {c}")
def lnfin(sx,eps):
    e(f"v_mul_f32 v{sx+1}, 0x3acccccd, v{sx+1}"); e(f"v_fmamk_f32 v{sx}, v{sx}, 0x3acccccd, v{eps}"); e(f"v_fma_f32 v{sx}, -v{sx+1}, v{sx+1}, v{sx}"); e(f"v_rsq_f32 v{sx}, abs(v{sx})")
def tr128(dst,tmp):
    e(f"v_and_b32 v{dst}, 3, v{vL}"); e(f"v_lshlrev_b32 v{dst}, 3, v{dst}"); e(f"v_bfe_u32 v{tmp}, v{vL}, 2, 2"); e(f"v_lshl_add_u32 v{dst}, v{tmp}, 7, v{dst}"); e(f"v_lshrrev_b32 v{tmp}, 4, v{vL}"); e(f"v_lshl_add_u32 v{dst}, v{tmp}, 10, v{dst}")
    e(f"v_bfe_u32 v{tmp}, v{vL}, 3, 2"); e(f"v_lshl_add_u32 v{dst}, v{tmp}, 5, v{dst}")
def warm(a,d,n,base,xs,rr=sR):
    e(f"v_min_u32 v{a}, {n-1}, v{vL}"); e(f"v_lshlrev_b32 v{a}, 7, v{a}"); sc(sT0,[(sX,xs),(rr,n*128)],base)
    e(f"buffer_load_dword v{d}, v{a}, {S(SW)}, s{sT0} offen sc1")
o.append(f"; @launch grid=(256,1,1) block=(256,1,1) lds={LDSSZ}")
o.append("""; One persistent launch, 256 workgroups (one per CU). The K/V window stays in registers for both layers.
; In-group hand-offs use plain stores only if all 32 workgroups of the group report the same XCC_ID, else sc1 stores.""")
o.append('.amdgcn_target "amdgcn-amd-amdhsa--gfx950"\n.text')
o.append(f".globl {NAME}_kernel\n.p2align 8\n.type {NAME}_kernel,@function\n{NAME}_kernel:")
e("s_cmp_ge_u32 s2, 256"); e("s_cbranch_scc1 DONE")
e("s_load_dwordx16 s[64:79], s[0:1], 0"); e("s_load_dwordx8 s[80:87], s[0:1], 64")
e("s_memtime s[98:99]" if P("CYC",0) else "s_memrealtime s[98:99]")
if P("PF",1):
    e("s_getpc_b64 s[60:61]"); lab("PCREF")
    e("v_lshlrev_b32 v14, 7, v0"); e("v_cmp_gt_u32 vcc, CODEEND-PCREF, v14"); e("v_mov_b32 v15, s61"); e("s_and_saveexec_b64 s[88:89], vcc"); e("s_cbranch_execz NOPF")
    e("v_add_co_u32 v14, vcc, s60, v14"); e("s_nop 1"); e("v_addc_co_u32 v15, vcc, 0, v15, vcc"); e("global_load_dword v79, v[14:15], off")
    lab("NOPF"); e("s_mov_b64 exec, s[88:89]")
e(f"v_and_b32 v{vL}, 63, v0"); e("v_lshrrev_b32 v13, 6, v0")
e(f"s_and_b32 s{sX}, s2, 7"); e(f"v_readfirstlane_b32 s{sWv}, v13")
e(f"s_lshr_b32 s{sR}, s2, 3"); e(f"s_lshr_b32 s{sHL}, s{sR}, 3"); e(f"s_lshl_b32 s{sT0}, s{sX}, 2"); e(f"s_add_u32 s{sH}, s{sHL}, s{sT0}"); e(f"s_and_b32 s{sS}, s{sR}, 7")
KAo,VO=80,82
e(f"v_lshrrev_b32 v19, 4, v{vL}"); e(f"v_bfe_u32 v21, v{vL}, 1, 3"); e(f"v_and_b32 v20, 1, v{vL}")
e(f"v_mul_u32_u24 v{KAo}, 384, v21"); e(f"v_lshl_add_u32 v{KAo}, v20, 4, v{KAo}"); e(f"v_lshl_add_u32 v{KAo}, v19, 5, v{KAo}")
sc(sT0,[(sS,3),(sWv,1)]); e(f"s_add_u32 s{sT1}, s{sS}, 384"); e(f"s_cmp_eq_u32 s{sWv}, 3"); e(f"s_cselect_b32 s{sT0}, s{sT1}, s{sT0}"); e(f"s_cselect_b32 s{sSTR}, 8, 24"); e(f"s_mulk_i32 s{sSTR}, 3072")
sc(sKV,[(sH,12582912),(sT0,3072)],28672*384); e(f"s_mov_b32 s{sKP}, s{sKV}")
def kloads(g0,g1,thr=-1):
    for g in range(g0,g1):
        for sg in range(3):
            if thr>=0: e(f"s_waitcnt vmcnt({thr})")
            e(f"buffer_load_dwordx4 {kreg(g,sg)}, v{KAo}, {S(SK)}, s{sKP} offen offset:{128*sg} nt")
        e(f"s_add_u32 s{sKP}, s{sKP}, s{sSTR}" if g<15 else f"s_lshl_b32 s{sSTR}, s{sSTR}, 1")
def vloads(u0,u1,thr=-1,bar=-1):
    for u in range(u0,u1):
        for z in range(2):
            for sg in range(3):
                if 48-(6*u+3*z+sg)==bar: e("s_barrier")
                if thr>=0: e(f"s_waitcnt vmcnt({thr})")
                e(f"buffer_load_dwordx4 {vreg(u>>1,u&1,z,sg)}, v{VO}, {S(SV)}, s{sKV} offen offset:{384*z+128*sg} nt")
        if u<7: e(f"s_add_u32 s{sKV}, s{sKV}, s{sSTR}")
uid=[0]
def dmaaddr(t0,t1,d,stride):
    e(f"v_lshrrev_b32 v{t1}, 3, v{vL}"); e(f"v_and_b32 v{t0}, 7, v{vL}"); e(f"v_and_b32 v{d}, 2, v{t1}"); e(f"v_xor_b32 v{t0}, v{t0}, v{d}"); e(f"s_and_b32 s{sT0}, s{sWv}, 1"); e(f"s_lshl_b32 s{sT0}, s{sT0}, 2"); e(f"v_xor_b32 v{t0}, s{sT0}, v{t0}")
    e(f"v_mul_u32_u24 v{d}, {stride}, v{t1}"); e(f"v_lshl_add_u32 v{d}, v{t0}, 4, v{d}")
def dma3(srdn,va,terms,lds,nbytes,stride):
    uid[0]+=1
    sc(sT0,terms+[(sWv,8*stride)]); sc(sT1,[(sWv,1024)],lds)
    lab(f"DMA{uid[0]}")
    e(f"s_mov_b32 m0, s{sT1}"); e(f"s_add_u32 s{sT1}, s{sT1}, 3072")
    e(f"buffer_load_dwordx4 v{va}, {S(srdn)}, s{sT0} offen nt lds"); e(f"v_xor_b32 v{va}, 64, v{va}")
    e(f"s_add_u32 s{sT0}, s{sT0}, {24*stride}"); e(f"s_cmp_lt_u32 s{sT1}, {lds+nbytes}"); e(f"s_cbranch_scc1 DMA{uid[0]}")
def w2dma(t0,t1,d): dmaaddr(t0,t1,d,1280); dma3(SWO,d,[(sX,192*1280),(sCG,128)],L_WO,24576,1280)
KA=P("KA",2); TA=P("TA",7); TB=P("TB",23); B1L=P("B1L",3); B2L=P("B2L",6)
e("s_waitcnt lgkmcnt(0)")
srd(SK,66,402653184); e(f"s_mov_b32 s{sFIRST}, 1"); e("s_mov_b32 s100, 0")
e(f"s_cmp_eq_u32 s{sWv}, 3"); e("s_cbranch_scc1 SETUP")
kloads(0,KA)
lab("SETUP")
srd(SW,86,1610612736); srd(SV,68,402653184); srd(SWQ,70,7864320); srd(SX,64,1280); srd(SOUT,82,1280); srd(SDBG,84,256)
e(f"v_mov_b32 v87, {OOB}"); e(f"v_mov_b32 v88, {OOB}")
for k in range(3): e(f"v_mov_b32 v{120+k}, {OOB}")
e(f"s_cmp_lg_u32 s{sWv}, 3"); e("s_cbranch_scc1 SETUP2")
for k in range(4): e(f"v_mov_b32 v{32+k}, -1")
vMEAN,vRS,vXS,vXRA,vQ0A,vNON=84,85,86,87,88,89
e("s_cmp_lg_u32 s2, 0"); e("s_cbranch_scc1 NONW")
e("s_or_b32 s101, s98, 0x20"); e("s_and_b32 s101, s101, 0xffffffe0"); e("v_mov_b32 v24, s101"); e("v_mov_b32 v25, 0"); ex(1); e(f"buffer_store_dword v24, v25, {S(SDBG)}, 0 offen sc1"); ex(-1)
lab("NONW")
e(f"v_lshlrev_b32 v24, 4, v{vL}"); e(f"v_lshlrev_b32 v27, 2, v{vL}"); e(f"s_mul_i32 s{sT0}, s2, 1536"); e(f"v_lshlrev_b32 v28, 3, v{vL}")
e(f"buffer_store_dwordx4 {V(32)}, v24, {S(SW)}, s{sT0} offen sc1"); e(f"buffer_store_dwordx2 v[32:33], v28, {S(SW)}, s{sT0} offen offset:1024 sc1")
e(f"v_mov_b32 v26, {OOB}"); e(f"v_mov_b32 v{vQ0A}, v24")
e(f"v_cmp_gt_u32 vcc, 40, v{vL}"); e(f"v_lshlrev_b32 v27, 2, v{vL}")
e(f"buffer_load_dwordx4 {V(44)}, v24, {S(SX)}, 0 offen"); e(f"buffer_load_dword v48, v27, {S(SX)}, 0 offen offset:1024")
e("v_cndmask_b32 v28, v26, v27, vcc"); e(f"s_mul_i32 s{sT0}, s{sS}, 160"); e(f"buffer_load_dword v{vXS}, v28, {S(SX)}, s{sT0} offen")
sc(sT0,[(sS,320)],W_XR); e(f"s_and_b32 s{sT1}, s2, 0xc7"); e(f"s_cmp_eq_u32 s{sT1}, 0"); e(f"s_cselect_b32 s{sT0}, s{sT0}, {OOB}"); e(f"v_lshl_add_u32 v{vXRA}, v{vL}, 3, s{sT0}"); e(f"v_cndmask_b32 v{vXRA}, v26, v{vXRA}, vcc")
for ee in range(3):
    e(f"v_add_u32 v24, {64*ee}, v{vL}"); e("v_mul_u32_u24 v36, 171, v24"); e("v_lshrrev_b32 v36, 12, v36"); e("v_mul_u32_u24 v37, 24, v36"); e("v_sub_u32 v37, v24, v37")
    e("v_and_b32 v24, 2, v36"); e("v_xor_b32 v37, v37, v24"); e("v_mul_u32_u24 v36, 12288, v36"); e(f"v_lshl_add_u32 v{38+ee}, v37, 4, v36")
assert all((c*171)>>12==c//24 for c in range(192))
sc(sT0,[(sS,80*12288),(sH,384)]); e(f"s_mov_b32 s{sT1}, {L_WQ}")
lab("WQL")
for ee in range(3):
    e(f"s_add_u32 m0, s{sT1}, {1024*ee}"); e("s_nop 0")
    e(f"buffer_load_dwordx4 v{38+ee}, {S(SWQ)}, s{sT0} offen nt lds"); e(f"v_xor_b32 v{38+ee}, 64, v{38+ee}")
e(f"s_add_u32 s{sT0}, s{sT0}, {8*12288}"); e(f"s_add_u32 s{sT1}, s{sT1}, 3072"); e(f"s_cmp_lt_u32 s{sT1}, {L_WQ+30720}"); e("s_cbranch_scc1 WQL")
e("v_mov_b32 v37, 0"); e(f"buffer_load_dword v{vNON}, v37, {S(SDBG)}, 0 offen sc1")
e("s_barrier")
e("s_waitcnt vmcnt(31)")
e(f"v_mov_b32 v36, 0x3f803f80"); e("v_mov_b32 v37, v36"); e("v_cndmask_b32 v36, 0, v36, vcc"); e(f"v_add_u32 v27, {L_S}, v27")
e("ds_write_b32 v27, v36 offset:1152"); e("ds_write_b32 v27, v37 offset:1408"); e(f"ds_write_b32 v27, v{vXS}")
e("v_mov_b64 v[36:37], 0"); e(f"ds_write_b32 v27, v36 offset:{L_ZERO-L_S}"); e(f"ds_write_b32 v27, v36 offset:{L_ZERO-L_S+256}")
e("v_mov_b32 v38, 0x3f803f80")
for k in range(5):
    e(f"v_dot2_f32_bf16 v36, v{44+k}, v{44+k}, v36"); e(f"v_dot2_f32_bf16 v37, v{44+k}, v38, v37")
e("s_nop 2")
for pat in ("quad_perm:[1,0,3,2]","quad_perm:[2,3,0,1]","row_half_mirror","row_mirror"):
    e(f"v_add_f32_dpp v36, v36, v36 {pat}{DPP}"); e(f"v_add_f32_dpp v37, v37, v37 {pat}{DPP}"); e("s_nop 0")
for kind in (16,32):
    swapadd(36,39,kind); swapadd(37,39,kind)
e("v_mov_b32 v39, 0x3727c5ac"); lnfin(36,39); e(f"v_mov_b32 v{vMEAN}, v37"); e(f"v_mul_f32 v{vRS}, 0x3dd53b94, v36")
lab("SETUP2")
e(f"s_cmp_ge_u32 s{sR}, 10"); e(f"s_cselect_b32 s{sP}, 1, 0"); e(f"s_cmp_ge_u32 s{sR}, 20"); e(f"s_cselect_b32 s{sT0}, 2, s{sP}"); e(f"s_mul_i32 s{sT0}, s{sT0}, 10"); e(f"s_sub_u32 s{sCG}, s{sR}, s{sT0}")
e(f"s_min_u32 s{sF}, s{sR}, 29"); e(f"s_cmp_ge_u32 s{sF}, 15"); e(f"s_cselect_b32 s{sMAT}, 1, 0"); e(f"s_mul_i32 s{sT0}, s{sMAT}, 15"); e(f"s_sub_u32 s{sT0}, s{sF}, s{sT0}")
e(f"s_mul_i32 s{sCGRP}, s{sT0}, 52"); e(f"s_lshr_b32 s{sCGRP}, s{sCGRP}, 8"); e(f"s_mul_i32 s{sT1}, s{sCGRP}, 5"); e(f"s_sub_u32 s{sRG}, s{sT0}, s{sT1}")
e(f"s_cmp_ge_u32 s{sR}, 20"); e(f"s_cselect_b32 s{SWO}, s80, s72"); e(f"s_cselect_b32 s{SWO+1}, s81, s73"); e(f"s_mov_b32 s{SWO+2}, 7864320"); e(f"s_cselect_b32 s{SWO+2}, 1966080, s{SWO+2}"); e(f"s_and_b32 s{SWO+1}, s{SWO+1}, 0xffff"); e(f"s_mov_b32 s{SWO+3}, 0x20000")
e(f"s_cmp_eq_u32 s{sMAT}, 1"); e(f"s_cselect_b32 s{SW13}, s78, s76"); e(f"s_cselect_b32 s{SW13+1}, s79, s77"); e(f"s_and_b32 s{SW13+1}, s{SW13+1}, 0xffff"); e(f"s_mov_b32 s{SW13+2}, 1966080"); e(f"s_mov_b32 s{SW13+3}, 0x20000")
e(f"s_mov_b32 s{sLB}, 0"); sc(63,[(sX,XS1)],LS+W_GB); sc(sIB,[(sX,XS0)],W_GB); e(f"s_mov_b32 s{sFAST}, 0")
e(f"s_mov_b32 s{sNR}, 0")
if os.environ.get("SPIN"): e("s_mov_b32 s95, s98")
if DBG: e(f"s_mov_b32 s{STB}, s98")
stamp(1)
e(f"v_and_b32 v24, 15, v{vL}"); e("v_cmp_eq_u32 vcc, 1, v24"); e(f"v_mov_b32 v25, {L_S}"); e(f"v_mov_b32 v26, {L_S+1152}"); e(f"v_cndmask_b32 v{vA}, v25, v26, vcc"); e(f"v_lshl_add_u32 v{vA}, v19, 4, v{vA}")
e(f"v_and_b32 v24, 3, v{vL}"); e("v_lshlrev_b32 v24, 4, v24"); e("v_and_b32 v25, 1, v19"); e("v_lshl_add_u32 v24, v25, 6, v24"); e(f"v_add_u32 v24, {L_QB}, v24")
e(f"v_bfe_u32 v25, v{vL}, 2, 2"); e(f"v_lshrrev_b32 v27, 5, v{vL}"); e("v_sub_u32 v25, v25, v27"); e(f"v_mov_b32 v26, {L_ZERO+128*P('CF',1)}")
for pi in range(2):
    e(f"v_cmp_eq_u32 vcc, {2*pi}, v25"); e("s_nop 1"); e(f"v_cndmask_b32 v{vQA+pi}, v26, v24, vcc")
e(f"v_and_b32 v24, 3, v{vL}"); e("v_cmp_eq_u32 vcc, 3, v24"); e("v_mov_b32 v25, 0xffff"); e("v_mov_b32 v26, 0xffff0000"); e("v_cndmask_b32 v25, v25, v26, vcc"); e("v_cndmask_b32 v24, v24, 0, vcc")
e("v_or_b32 v24, 12, v24"); e("v_mul_u32_u24 v24, 0x1111, v24"); e(f"v_bfe_u32 v26, v{vL}, 1, 1"); e("v_mul_u32_u24 v26, 0xaaaa, v26"); e("v_add_u32 v26, 0x4444, v26"); e(f"v_lshl_add_u32 v{vIDX}, v24, 16, v26")
e(f"v_and_b32 v24, 4, v{vL}"); e("v_cmp_eq_u32 vcc, 0, v24"); e("s_nop 1"); e(f"v_cndmask_b32 v{vMK}, 0, v25, vcc"); e(f"v_cndmask_b32 v{vMK+1}, v25, 0, vcc")
e(f"v_mul_u32_u24 v{VO}, s{sSTR}, v27"); e(f"v_bfe_u32 v24, v{vL}, 3, 1"); e("v_mul_u32_u24 v24, 1536, v24"); e(f"v_add_u32 v{VO}, v{VO}, v24"); e("v_and_b32 v24, 1, v19"); e("v_mul_u32_u24 v24, 768, v24"); e(f"v_add_u32 v{VO}, v{VO}, v24"); e(f"v_and_b32 v24, 7, v{vL}"); e(f"v_lshl_add_u32 v{VO}, v24, 4, v{VO}")
sc(sT0,[(sHL,6144)],I_Q); e(f"v_lshl_add_u32 v8, v0, 4, s{sT0}")
sc(sT0,[(sHL,64)],I_QS); e(f"v_lshl_add_u32 v9, v24, 3, s{sT0}"); e(f"v_bfe_u32 v25, v{vL}, 3, 1"); e("v_lshl_add_u32 v9, v25, 2, v9")
qperm(10,0,24); e("v_mov_b32 v11, 0x3acccccd"); e(f"v_lshlrev_b32 v{vTB}, 4, v0"); e(f"v_add_u32 v{vTB}, {L_TAB}, v{vTB}")
e(f"s_cmp_lg_u32 s{sWv}, 3"); e("s_cbranch_scc1 KBAR")
e(f"s_lshr_b32 s{sT1}, s2, 4"); e(f"s_and_b32 s{sCNT}, s2, 15"); sc(sT0,[(sT1,16384),(sCNT,512)],W_PRB); e(f"s_and_b32 s{sT1}, s{sR}, 1"); e(f"s_lshl_b32 s{sT1}, s{sT1}, 13"); e(f"s_add_u32 s{sT0}, s{sT0}, s{sT1}"); e(f"s_xor_b32 s{sT1}, s{sT0}, 8192")
e("s_memtime s[88:89]"); e("s_waitcnt lgkmcnt(0)")
e(f"s_buffer_load_dword s1, {S(SW)}, s{sT0}"); e("s_waitcnt lgkmcnt(0)"); e("s_memtime s[90:91]"); e("s_waitcnt lgkmcnt(0)")
e(f"s_buffer_load_dword s1, {S(SW)}, s{sT1}"); e("s_waitcnt lgkmcnt(0)"); e("s_memtime s[92:93]"); e("s_waitcnt lgkmcnt(0)")
e("s_sub_u32 s88, s90, s88"); e("s_sub_u32 s90, s92, s90"); e("s_cmp_lt_u32 s90, s88"); e("s_cselect_b32 s1, 1, 0"); e(f"s_xor_b32 s1, s1, s{sR}")
e(f"s_getreg_b32 s{sT0}, hwreg(HW_REG_XCC_ID)"); e(f"s_lshr_b32 s{sT0}, s{sT0}, 2"); e(f"s_xor_b32 s1, s1, s{sT0}"); e("s_and_b32 s1, s1, 1"); e("s_lshl_b32 s1, s1, 4")
e(f"s_mov_b32 s{sCNT}, 0"); e("v_mov_b32 v37, 0")
lab("NOP")
e("s_waitcnt vmcnt(0)"); e(f"v_readfirstlane_b32 s{sADD}, v{vNON}"); e(f"s_cmp_lg_u32 s{sADD}, 0"); e("s_cbranch_scc1 NOOK")
e(f"buffer_load_dword v{vNON}, v37, {S(SDBG)}, 0 offen sc1")
again("NOP",4)
lab("NOOK")
e(f"s_getreg_b32 s{sT0}, hwreg(HW_REG_XCC_ID)"); e(f"s_and_b32 s{sT0}, s{sT0}, 15"); e(f"s_or_b32 s{sADD}, s{sADD}, s{sT0}"); e(f"s_or_b32 s1, s1, s{sADD}"); e(f"v_mov_b32 v36, s1"); sc(sT0,[(sX,128),(sR,4)],W_FL)
ex(1); e(f"buffer_store_dword v36, v37, {S(SW)}, s{sT0} offen sc1"); ex(-1)
e(f"s_mov_b32 s{sWv}, 0"); e("s_branch Q0L")
lab("KBAR")
early(4)
e("s_barrier")
early(5)
if P("EARLY",0):
    kloads(KA,KA+1,TA); early(6); kloads(KA+1,6,TA); early(8); kloads(6,11,TA); early(9); kloads(11,16,TA); early(10)
else: kloads(KA,16,TA)
vloads(0,8,TA,B1L)
stamp(13)
e("s_branch TABLES")

cm('===== per-thread address tables (built once, layer independent)')
T_X,T_O1,T_O2,T_F1,T_F2,T_W,T_Q1,T_Q2=[4096*k for k in range(8)]
def tread(dst,t): e(f"ds_read_b128 {V(dst)}, v{vTB} offset:{t}")
def trq(d1,d2,t):
    e(f"v_and_b32 v{t}, 3, v{vL}"); e(f"v_lshrrev_b32 v{d1}, 4, v{vL}"); e(f"v_bfe_u32 v{d2}, v{vL}, 2, 2"); e(f"v_lshlrev_b32 v{t}, 3, v{t}")
    e(f"v_mul_u32_u24 v{d2}, 384, v{d2}"); e(f"v_add_u32 v{t}, v{t}, v{d2}"); e(f"v_bfe_u32 v{d2}, v{vL}, 3, 2"); e(f"v_xor_b32 v{d2}, s{sWv}, v{d2}"); e(f"v_lshl_add_u32 v{t}, v{d2}, 5, v{t}"); e(f"v_add_u32 v{t}, {L_WQ}, v{t}")
    e(f"v_and_b32 v{d2}, 1, v{d1}"); e(f"v_mul_u32_u24 v{d1}, 3072, v{d1}"); e(f"v_mul_u32_u24 v{d2}, 3072, v{d2}"); e(f"v_add_u32 v{d1}, v{d1}, v{t}"); e(f"v_add_u32 v{d2}, v{d2}, v{t}")
def keep(r,cmp):
    e(cmp); e("s_nop 1"); e(f"v_cndmask_b32 v{r}, v23, v{r}, vcc")
with Tail():
    lab("TABLES")
    N15,C4,L7,L31,H5,ROW=24,25,26,27,28,29
    e(f"v_mov_b32 v23, {OOB}"); e(f"v_and_b32 v{N15}, 15, v{vL}"); e(f"v_lshrrev_b32 v{C4}, 4, v{vL}"); e(f"v_and_b32 v{L7}, 7, v{vL}"); e(f"v_and_b32 v{L31}, 31, v{vL}"); e(f"v_lshrrev_b32 v{H5}, 5, v{vL}"); a_rowlocal(ROW)
    def put(t): e(f"ds_write_b128 v{vTB}, v[16:19] offset:{t}")
    e(f"v_lshrrev_b32 v16, 2, v{vL}"); e("v_lshlrev_b32 v16, 7, v16"); e(f"v_and_b32 v20, 3, v{vL}"); e("v_lshl_add_u32 v16, v20, 2, v16"); sc(sT0,[(sHL,3072),(sWv,768),(sS,16)],I_O); e(f"v_add_u32 v16, s{sT0}, v16")
    keep(16,f"v_cmp_gt_u32 vcc, 24, v{vL}"); sc(sT0,[(sHL,32),(sS,4)],I_LSE); e(f"s_cmp_eq_u32 s{sWv}, 3"); e(f"s_cselect_b32 s{sT0}, s{sT0}, {OOB}") if P("ONE",1) else None
    e(f"v_writelane_b32 v16, s{sT0}, 24")
    e(f"v_lshlrev_b32 v17, 4, v{L7}"); e(f"v_and_b32 v20, 1, v{C4}"); e(f"v_lshl_add_u32 v17, v20, 7, v17"); e(f"v_mul_u32_u24 v20, 768, v{H5}"); e("v_add_u32 v17, v17, v20"); sc(sT0,[(sWv,1536)],L_OACC); e(f"v_add_u32 v17, s{sT0}, v17")
    e(f"v_bfe_u32 v20, v{vL}, 3, 1"); e(f"v_xor_b32 v20, v20, v{H5}"); e("v_lshl_add_u32 v19, v20, 3, v17"); e("v_add_u32 v19, 512, v19"); e("v_lshl_add_u32 v17, v20, 8, v17")
    if P("CF",1):
        e(f"s_mul_i32 s{sT0}, s{sWv}, 24"); e(f"v_min_u32 v21, 23, v{vL}"); e(f"v_add_u32 v21, s{sT0}, v21"); e("v_lshrrev_b32 v18, 5, v21"); e("v_lshlrev_b32 v18, 8, v18")
        for sb,wd,db in ((1,1,7),(2,3,4),(0,1,3)): e(f"v_bfe_u32 v20, v21, {sb}, {wd}"); e(f"v_lshl_add_u32 v18, v20, {db}, v18")
        e(f"v_add_u32 v18, {L_OACC}, v18")
    else:
        sc(sT0,[(sWv,192)],L_OACC); e(f"v_min_u32 v18, 23, v{vL}"); e(f"v_lshl_add_u32 v18, v18, 3, s{sT0}")
    put(T_X)
    e(f"v_lshlrev_b32 v16, 4, v{L7}"); e(f"v_lshl_add_u32 v16, v{C4}, 7, v16"); sc(sT0,[(sP,6144),(sWv,1536)],I_O); e(f"v_add_u32 v16, s{sT0}, v16"); keep(16,f"v_cmp_gt_u32 vcc, 8, v{N15}")
    e(f"s_lshr_b32 s{sT1}, s{sWv}, 1"); sc(sT0,[(sP,64),(sT1,32)],I_LSE); e(f"v_lshl_add_u32 v17, v{C4}, 2, v{L7}"); e("v_and_b32 v17, 7, v17"); e(f"v_lshl_add_u32 v17, v17, 2, s{sT0}")
    sc(sT0,[(sCG,256)],W_XR); e(f"s_or_b32 s{sT1}, s{sX}, s{sP}"); e(f"s_cmp_eq_u32 s{sT1}, 0"); e(f"s_cselect_b32 s{sT0}, s{sT0}, {OOB}"); e(f"v_lshl_add_u32 v18, v{vL}, 2, s{sT0}")
    e(f"v_lshlrev_b32 v19, 11, v{H5}"); e(f"v_lshl_add_u32 v19, v{L31}, 2, v19"); e(f"s_lshr_b32 s{sT1}, s{sCG}, 1"); sc(sT0,[(sCG,4096),(sT1,8192),(sX,256),(sP,128)],W_Y); e(f"v_add_u32 v19, s{sT0}, v19"); put(T_O1)
    sc(sT0,[(sWv,512)],L_RED); e(f"v_lshl_add_u32 v16, v{L31}, 4, s{sT0}"); e(f"v_lshl_add_u32 v16, v{H5}, 11, v16")
    e(f"v_lshlrev_b32 v17, 4, v{N15}"); e(f"v_lshl_add_u32 v17, v{C4}, 2, v17"); e(f"v_add_u32 v17, {L_RED}, v17"); e(f"v_mov_b32 v18, {L_ML}"); sc(sT0,[(sWv,4)],L_ML); e(f"v_mov_b32 v19, {L_ML+40}"); e(f"v_writelane_b32 v19, s{sT0}, 0"); put(T_O2)
    e(f"v_lshlrev_b32 v16, 10, v{H5}"); e(f"v_lshl_add_u32 v16, v{L31}, 2, v16"); sc(sT0,[(sRG,16384),(sWv,2048)],W_Y); e(f"v_add_u32 v16, s{sT0}, v16")
    e(f"v_lshlrev_b32 v17, 1, v{ROW}"); e(f"v_add_u32 v17, {L_S+256}, v17")
    sc(sT0,[(sF,512)],W_X1); e(f"s_cmp_lt_u32 s{sF}, 5"); e(f"s_cselect_b32 s{sT0}, s{sT0}, {OOB}"); e(f"s_cmp_eq_u32 s{sX}, 0"); e(f"s_cselect_b32 s{sT0}, s{sT0}, {OOB}"); e(f"v_lshl_add_u32 v18, v{ROW}, 2, s{sT0}"); keep(18,f"v_cmp_gt_u32 vcc, 32, v{vL}")
    sc(sT0,[(sCGRP,64),(sWv,16)]); e(f"v_add_u32 v19, s{sT0}, v{vL}"); sc(sT0,[(sMAT,3072),(sRG,4)],I_G); sc(sT1,[(sMAT,4)],6144+I_G); e(f"s_cmp_eq_u32 s{sRG}, 4"); e(f"s_cselect_b32 s{sT0}, s{sT1}, s{sT0}"); e(f"s_cselect_b32 s{sT1}, 3, 4"); e(f"v_lshlrev_b32 v19, s{sT1}, v19"); e(f"v_add_u32 v19, s{sT0}, v19")
    keep(19,f"v_cmp_gt_u32 vcc, 16, v{vL}"); put(T_F1)
    sc(sT0,[(sF,8)],I_GS); e(f"s_cmp_eq_u32 s{sWv}, 3"); e(f"s_cselect_b32 s{sT0}, s{sT0}, {OOB}") if P("ONE",1) else None
    if P("ONE",1): e(f"s_cmp_lt_u32 s{sF}, 5"); e(f"s_cselect_b32 s{sT0}, s{sT0}, {OOB}")
    e("v_mov_b32 v16, v23"); e(f"v_writelane_b32 v16, s{sT0}, 0")
    tr128(17,20); e(f"s_lshl_b32 s{sT0}, s{sWv}, 5"); e(f"v_xor_b32 v17, s{sT0}, v17")
    e("v_lshlrev_b32 v18, 4, v0"); e(f"v_add_u32 v18, {I_G}, v18"); e("v_lshlrev_b32 v19, 3, v0"); e(f"v_add_u32 v19, {I_G+6144}, v19"); keep(18,"v_cmp_gt_u32 vcc, 192, v0"); e("v_cndmask_b32 v19, v23, v19, vcc"); put(T_F2)
    e(f"v_lshlrev_b32 v16, 3, v{L7}"); e(f"v_add_u32 v16, {I_GS}, v16"); e(f"v_bfe_u32 v20, v{vL}, 3, 1"); e("v_lshl_add_u32 v16, v20, 2, v16"); keep(16,f"v_cmp_gt_u32 vcc, 5, v{L7}")
    if P("ONE",1): keep(16,"v_cmp_gt_u32 vcc, 192, v0")
    sc(sT0,[(sCG,256),(sWv,64)],W_X1); e(f"s_cmp_eq_u32 s{sX}, 0"); e(f"s_cselect_b32 s{sT0}, s{sT0}, {OOB}"); e(f"v_lshl_add_u32 v17, v{N15}, 2, s{sT0}")
    e(f"s_lshr_b32 s{sT1}, s{sCG}, 2"); e(f"s_lshr_b32 s{sCNT}, s{sWv}, 1"); sc(sT0,[(sCG,2048),(sT1,8192),(sCNT,1024-128),(sWv,64),(sX,128)],W_Y2); e(f"v_lshl_add_u32 v18, v{N15}, 2, s{sT0}"); e(f"v_lshl_add_u32 v18, v{C4}, 13, v18"); keep(18,f"v_cmp_gt_u32 vcc, 32, v{vL}")
    e("v_lshlrev_b32 v19, 1, v0"); e(f"v_add_u32 v19, {L_S+512}, v19"); put(T_W)
    e(f"s_lshr_b32 s{sT1}, s{sS}, 2"); sc(sT0,[(sHL,6144),(sWv,256),(sT1,3072-16),(sS,4)],I_Q); e(f"v_lshl_add_u32 v16, v{vL}, 4, s{sT0}"); keep(16,f"v_cmp_gt_u32 vcc, 16, v{vL}")
    sc(sT0,[(sHL,64),(sS,8)],I_QS); e(f"s_cmp_eq_u32 s{sWv}, 3"); e(f"s_cselect_b32 s{sT0}, s{sT0}, {OOB}") if P("ONE",1) else None
    e("v_mov_b32 v17, v23"); e(f"v_writelane_b32 v17, s{sT0}, 0")
    e(f"s_mul_i32 s{sT0}, s{sS}, 80"); e(f"v_add_u32 v20, s{sT0}, v{ROW}"); e("v_lshrrev_b32 v18, 5, v20"); e("v_lshlrev_b32 v18, 10, v18"); e("v_lshrrev_b32 v21, 8, v20"); e("v_lshl_add_u32 v18, v21, 13, v18"); e("v_and_b32 v21, 31, v20"); e("v_lshl_add_u32 v18, v21, 2, v18")
    e(f"v_lshl_add_u32 v18, v{H5}, 9, v18"); e(f"v_add_u32 v18, {W_Y2}, v18"); keep(18,f"v_cmp_gt_u32 vcc, 80, v{ROW}")
    e(f"v_lshlrev_b32 v19, 1, v{ROW}"); e(f"v_add_u32 v19, {L_S}, v19"); put(T_Q1)
    e(f"s_and_b32 s{sT1}, s2, 0xc7"); e(f"s_cmp_eq_u32 s{sT1}, 0"); e(f"s_mov_b32 s{sT0}, {W_XR}"); e(f"s_cselect_b32 s{sT0}, s{sT0}, {OOB}"); e(f"v_lshl_add_u32 v16, v20, 2, s{sT0}"); e("v_lshlrev_b32 v19, 1, v20")
    e("s_and_b32 vcc_hi, vcc_hi, 0"); e("s_nop 1"); e("v_cndmask_b32 v16, v23, v16, vcc"); e("v_cndmask_b32 v19, v23, v19, vcc")
    trq(17,18,21); put(T_Q2)
    e("s_branch ENTRY0")
cm('===== Y2 gather / Q stage')
QF=44; QAF=32; QD=16
QCR=[32,34,36,38,40,42,26,28]
def qcissue():
    e(f"v_lshlrev_b32 v30, 3, v0"); sc(sT0,[(sH,12288)],W_QC)
    for j in range(8):
        if j%2==0: e(f"s_add_u32 s{sT1}, s{sT0}, {1536*j}")
        e(f"buffer_load_dwordx2 {V(QCR[j],2)}, v30, {S(SW)}, s{sT1} offen offset:{1536*(j%2)} sc1")
def qccheck():
    regs=QCR
    for j in range(8): e(f"v_bitop3_b32 v{regs[j]+1}, v{regs[j]}, v{regs[j]+1}, s{sNON} bitop3:0x96")
    e(f"v_add_f32 v{vCSQ}, v{regs[0]}, v{regs[1]}")
    for j in range(2,8): e(f"v_add_f32 v{vCSQ}, v{vCSQ}, v{regs[j]}")
    for j in (1,3,5): e(f"v_or3_b32 v{regs[0]+1}, v{regs[0]+1}, v{regs[j]+1}, v{regs[j+1]+1}")
    e(f"v_or_b32 v{regs[0]+1}, v{regs[0]+1}, v{regs[7]+1}")
    e(f"v_cmp_ne_u32 vcc, 0, v{regs[0]+1}")
def y2loads():
    for j in range(4): e(f"buffer_load_dword v{22+j}, v16, {S(SW)}, s{sKV} offen offset:{128*j} sc1")
lab("LOOP")
tread(14,T_Q1); tread(18,T_Q2); e(f"s_mov_b32 s{sKV}, s{sNEAR}"); e(f"s_mov_b32 s{sCNT}, 0")
e(f"s_cmp_lg_u32 s{sLB}, 0"); e("s_cbranch_scc1 FINAL")
e("s_waitcnt lgkmcnt(0)")
lab("QTR")
for ks in range(3):
    for tt in range(3):
        r=QF+4*(3*tt+ks)
        for hf in range(2): e(f"ds_read_b64_tr_b16 {V(r+2*hf,2)}, v{19 if ks<2 else 20} offset:{ks*12288+tt*128+hf*1536}")
e(f"s_cmp_lg_u32 s{sFIRST}, 0"); e("s_cbranch_scc1 QA0")
e(f"s_mov_b32 s{sKP}, s{sIB}"); e(f"s_mov_b32 s{sLB}, {LS}"); e(f"s_mov_b32 s{sIB}, s63"); bases()
e(f"s_cmp_eq_u32 s{sWv}, 3"); e("s_cbranch_scc1 QX")
e(f"s_sub_u32 s{sT0}, s{sR}, 20"); e(f"s_cmp_ge_u32 s{sT0}, 10"); e("s_cbranch_scc1 HOOKL")
qcissue(); gate("GY2",5)
lab("GYB")
with Tail():
    lab("HOOKL")
    if P("GSA",0):
        e(f"s_cmp_ge_u32 s{sR}, 30"); e("s_cbranch_scc1 HL1")
        warm(31,31,(XS1//128+40+19)//20,LS+W_XR,XS1); qcissue()
        lab("HL1")
        e(f"v_min_u32 v24, 4, v{vL}"); e("v_lshlrev_b32 v24, 3, v24"); e(f"v_add_u32 v24, {I_GS}, v24")
        lab("GSW")
        e(f"buffer_load_dword v25, v24, {S(SW)}, s{sKP} offen sc1"); e("s_waitcnt vmcnt(0)")
        retry("GSW","NOGSW",("v25","v25"),P("GSS",1))
        e(f"s_cmp_lt_u32 s{sR}, 30"); e("s_cbranch_scc1 HL2"); qcissue(); lab("HL2")
        gate("GY0",14); e(f"s_mov_b32 s{sCNT}, 0")
        e("s_branch GYB")
    else:
        e(f"s_cmp_lt_u32 s{sR}, 30"); e("s_cbranch_scc1 NOGSW")
        e(f"v_mov_b32 v30, {I_GS}")
        lab("GSW")
        e(f"buffer_load_dword v31, v30, {S(SW)}, s{sKP} offen sc1"); e("s_waitcnt vmcnt(0)")
        retry("GSW","NOGSW",("v31","v31"),2)
        e(f"s_cmp_ge_u32 s{sR}, 30"); e(f"s_cselect_b32 s{sT1}, 10, 0"); e(f"s_sub_u32 s{sT1}, s{sR}, s{sT1}")
        warm(31,31,(XS1//128+40+21)//22,LS+W_XR,XS1,sT1)
        qcissue(); gate("GY0",23); e(f"s_mov_b32 s{sCNT}, 0")
        e("s_branch GYB")
    lab("QCA")
    qcissue(); e("s_waitcnt vmcnt(0)")
    again("QCP",2)
    e("s_branch Y2W")
    lab("Y2P")
    y2loads(); e("s_branch Y2W")
fine("Y2",13)
y2loads()
e("s_waitcnt vmcnt(4)")
lab("QCP")
qccheck(); e("s_cbranch_vccnz QCA")
lab("Y2W")
def y2sum():
    e("s_waitcnt vmcnt(0)")
    e("v_pk_add_f32 v[22:23], v[22:23], v[24:25]"); e("v_add_f32 v30, v22, v23"); swapadd(30,31,32)
    e("v_cmp_u_f32 vcc, v30, v30"); e("v_cvt_pk_bf16_f32 v30, v30, v30")
y2sum(); e("ds_write_b16 v17, v30")
fail("vccnz","Y2P",SLEEP)
finecnt("Y2")
stamp(2)
e("v_and_b32 v30, 0xffff0000, v30"); pubs([pub(30,18,"L")])
lab("QX")
e("s_waitcnt lgkmcnt(0)"); e("s_barrier")
lab("QA0")
for ks in range(3): e(f"ds_read_b128 {V(QAF+4*ks)}, v{vA} offset:{64*ks}")
e(f"s_cmp_lg_u32 s{sFIRST}, 0")
for ks in range(3):
    e(f"s_waitcnt lgkmcnt({2-ks})")
    if ks<2: MF(V(QD+12),V(QAF+4*ks),V(QAF+4*ks),"0" if ks==0 else V(QD+12))
    for tt in range(3): MF(V(QD+4*tt),V(QAF+4*ks),V(QF+4*(3*tt+ks)),"0" if ks==0 else V(QD+4*tt))
MF(V(QD+12),V(QAF+8),V(QAF+8),V(QD+12))
e("s_cbranch_scc1 HOOKA")
QD_=64; ACC=40
zero=[f"v_mov_b64 {V(QD_+2*k,2)}, 0" for k in range(8)]+[f"v_mov_b64 {V(ACC+2*k,2)}, 0" for k in range(6)]
for x in zero[:4]: e(x)
pubs([pub(QD+4*tt,14,"I",1024*tt) for tt in range(3)]+[pub(QD+12,15,"I",0,2)],3)
with Tail():
    lab("Q0L")
    trq(19,20,21); e("s_branch QTR")
    lab("HOOKA")
    ex("0xffff"); e("s_nop 3")
    sc(sT0,[(sWv,64)],L_OACC); e(f"v_lshl_add_u32 v14, v{vL}, 2, s{sT0}")
    for tt in range(3):
        d=QD+4*tt
        e(f"ds_write_b32 v14, v{d+1} offset:{L_CSP-L_OACC+256*tt}"); e(f"v_fma_f32 v{d}, -v{vMEAN}, v{d+1}, v{d}"); e(f"v_mul_f32 v{d}, v{d}, v{vRS}"); e(f"ds_write_b32 v14, v{d} offset:{256*tt}")
    ex(-1)
    e(f"s_add_u32 s{sWv}, s{sWv}, 1"); e(f"s_cmp_lt_u32 s{sWv}, 4"); e("s_cbranch_scc1 Q0L")
    e(f"s_mov_b32 s{sWv}, 3")
    e(f"v_lshlrev_b32 v14, 2, v{vL}"); e(f"v_add_u32 v14, {L_OACC}, v14"); e("ds_read2st64_b32 v[16:17], v14 offset0:0 offset1:1"); e("ds_read_b32 v18, v14 offset:512")
    sc(sT0,[(sH,8192),(sS,1024)],W_Q0); e("s_waitcnt lgkmcnt(0)")
    e("v_bitop3_b32 v19, v16, v17, v18 bitop3:0x96"); e(f"v_xor_b32 v19, v19, v{vNON}")
    e(f"buffer_store_dwordx4 v[16:19], v{vQ0A}, {S(SW)}, s{sT0} offen sc1")
    stamp(3)
    gate("GQ0",40)
    qperm(15,vL,14); sc(sT0,[(sH,8192)],W_Q0); e(f"s_add_u32 s{sT1}, s{sT0}, 4096"); e(f"s_mov_b32 s{sCNT}, 0")
    lab("Q0P")
    for j in range(8): e(f"buffer_load_dwordx4 {V(16+4*j)}, v{vQ0A}, {S(SW)}, s{sT0 if j<4 else sT1} offen offset:{1024*(j%4)} sc1")
    e("v_mov_b32 v48, 0"); e("s_waitcnt vmcnt(0)")
    for j in range(8):
        b=16+4*j
        e(f"v_bitop3_b32 v49, v{b}, v{b+1}, v{b+2} bitop3:0x96"); e(f"v_bitop3_b32 v49, v49, v{b+3}, v{vNON} bitop3:0x96"); e("v_or_b32 v48, v48, v49")
    e("v_cmp_ne_u32 vcc, 0, v48"); e("s_cbranch_vccz Q0OK")
    again("Q0P",P("Q0S",16))
    lab("Q0OK")
    for j in range(1,8):
        e(f"v_pk_add_f32 v[16:17], v[16:17], {V(16+4*j,2)}"); e(f"v_add_f32 v18, v18, v{18+4*j}")
    e("v_cvt_pk_bf16_f32 v16, v16, v17"); e("v_cvt_pk_bf16_f32 v18, v18, v18"); e("ds_write_b16 v15, v16"); e("ds_write_b16_d16_hi v15, v16 offset:128"); e("ds_write_b16 v15, v18 offset:256")
    stamp(14)
    gate("GHS",0)
    e(f"s_mov_b32 s{sCNT}, 0")
    lab("HSP")
    e(f"s_mov_b32 s{sT0}, {W_FL}"); e(f"buffer_load_dwordx4 v[24:27], v{vQ0A}, {S(SW)}, s{sT0} offen sc1"); e("s_waitcnt vmcnt(0)")
    for k in range(4): e(f"v_xor_b32 v{20+k}, s{sADD}, v{24+k}")
    e("v_or3_b32 v20, v20, v21, v22"); e("v_or_b32 v20, v20, v23"); e("v_cmp_lt_u32 vcc, 31, v20"); e("s_cbranch_vccz HSOK")
    again("HSP",8)
    lab("HSOK")
    e(f"s_mov_b32 s{sT1}, 0")
    for k in range(4): e(f"v_and_b32 v{24+k}, 16, v{24+k}"); e(f"v_cmp_ne_u32 vcc, 0, v{24+k}"); e(f"s_bcnt1_i32_b64 s{sT0}, vcc"); e(f"s_add_u32 s{sT1}, s{sT1}, s{sT0}")
    e("v_and_b32 v20, 15, v20")
    if DBG: e(f"s_add_u32 s{STB+24}, s{STB}, s{sT1}")
    e(f"s_cmp_gt_u32 s{sT1}, 128"); e(f"s_cselect_b32 s{sT1}, 2, 0"); e(f"s_lshr_b32 s{sT0}, s{sADD}, 1"); e(f"s_xor_b32 s{sT1}, s{sT1}, s{sT0}"); e(f"s_and_b32 s{sT1}, s{sT1}, 2"); e(f"s_lshl_b32 s{sT0}, s{sX}, 3")
    e("v_cmp_ne_u32 vcc, 0, v20"); e(f"s_lshr_b64 s[60:61], vcc, s{sT0}"); e(f"s_and_b32 s{sT0}, s60, 0xff"); e(f"s_cselect_b32 s{sFAST}, 0, 1")
    if P("FORCESLOW",0): e(f"s_mov_b32 s{sFAST}, 0")
    e(f"v_mov_b32 v38, {L_FAST}"); e(f"s_or_b32 s{sT1}, s{sT1}, s{sFAST}"); e(f"v_or_b32 v39, s{sT1}, v{vNON}"); e("ds_write_b32 v38, v39")
    e(f"v_and_b32 v21, 0xffff0000, v{vXS}"); e(f"v_lshlrev_b32 v20, 16, v{vXS}")
    e(f"buffer_store_dwordx2 v[20:21], v{vXRA}, {S(SW)}, 0 offen sc1")
    stamp(13)
    e("s_branch TABLES")
cm('===== ENTRY')
EG=52; ES=62
def enloads():
    e(f"buffer_load_dword v{ES}, v9, {S(SW)}, s{sIB} offen sc1")
    for j in range(2): e(f"buffer_load_dwordx4 {V(EG+4*j)}, v8, {S(SW)}, s{sIB} offen offset:{3072*j} sc1")
def xreads(): e(f"ds_read_b64 v[14:15], v{vTB} offset:{T_X}"); e(f"ds_read_b64 v[60:61], v{vTB} offset:{T_X+8}")
xreads()
e(f"s_cmp_eq_u32 s{sWv}, 3"); e("s_cbranch_scc1 EN3")
gate("DE0",3); fine("EN",13)
enloads()
for x in zero[4:]: e(x)
e(f"s_mov_b32 s{sCNT}, 0")
cm("softmax scale c = log2(e)/sqrt(192) folded into the LN constants: 1/(640c), eps/c^2, 1/(640c^2), colsum*c")
e("v_mov_b32 v37, 0x3c75e03e"); e("v_mov_b32 v38, 0x3a71d1e6"); e("v_mov_b32 v39, 0x3e13985d"); e(f"v_mul_f32 v{vCSQ}, 0x3dd53b95, v{vCSQ}")
gate("DE1",1)
lab("ENP")
enloads()
gate("DE2",0)
e("s_waitcnt vmcnt(3)")
fine("EN",14)
with Tail():
    lab("EN3")
    for x in zero[4:]: e(x)
    e("s_branch ENOK2")
    lab("ENTRY0")
    xreads()
    for x in zero: e(x)
    e(f"s_cmp_lg_u32 s{sWv}, 3"); e("s_cbranch_scc1 QFRAG")
    e("s_waitcnt lgkmcnt(0)"); e("s_barrier")
    stamp(2)
    kloads(0,16,TB); vloads(0,8,TB,B2L)
    e("s_branch QFRAG")
    lab("HOOKF")
    e(f"v_mov_b32 v52, {L_FAST}"); e("ds_read_b32 v52, v52"); e(f"s_mov_b32 s{sFIRST}, 0"); e("s_waitcnt lgkmcnt(0)"); e(f"v_readfirstlane_b32 s{sNON}, v52"); e(f"s_and_b32 s{sFAST}, s{sNON}, 1"); e(f"s_and_b32 s{sNR}, s{sNON}, 2"); e(f"s_lshl_b32 s{sNR}, s{sNR}, 12"); e(f"s_and_b32 s{sNON}, s{sNON}, 0xffffffe0")
    bases()
    e("s_waitcnt vmcnt(48)"); e("s_branch QK")
P3=("quad_perm:[1,0,3,2]","quad_perm:[2,3,0,1]","row_half_mirror")
def sred(i,d,src): e(f"v_add_f32_dpp v{d}, v{src}, v{src} {P3[i]}{DPP}")
sred(0,32,ES); e(f"v_pk_add_f32 v[16:17], {V(EG,2)}, {V(EG+2,2)}"); e(f"v_pk_add_f32 v[20:21], {V(EG+4,2)}, {V(EG+6,2)}")
sred(1,32,32); e("v_pk_add_f32 v[16:17], v[16:17], v[20:21]"); e("v_mov_b32 v34, v38")
sred(2,32,32); e("v_add_f32 v16, v16, v17"); e("s_nop 0")
e(f"v_mul_f32_dpp v33, v32, v37 row_newbcast:8{DPP}"); e(f"v_fmac_f32_dpp v34, v32, v39 row_newbcast:0{DPP}"); e("v_fma_f32 v34, -v33, v33, v34"); e("v_rsq_f32 v34, abs(v34)")
e(f"v_fma_f32 v16, -v33, v{vCSQ}, v16"); e("v_mul_f32 v16, v16, v34")
e("v_cvt_pk_bf16_f32 v17, v16, v16"); e("ds_write_b16 v10, v17")
e("v_cmp_u_f32 vcc, v16, v16"); fail("vccnz","ENP",SLEEPI)
fine("EN",15); finecnt("EN")
lab("ENOK2")
e("s_waitcnt lgkmcnt(0)"); e("s_barrier")
lab("QFRAG")
stamp(4)
QFR=16
for f in range(6): e(f"ds_read_b128 {V(QFR+4*f)}, v{vQA+f//3} offset:{128*(f%3)}")
e(f"s_cmp_eq_u32 s{sLB}, 0"); e("s_cbranch_scc1 HOOKF")
if not P("QW",0): e("s_waitcnt vmcnt(0)")
lab("QK")
cm('===== QK  (scores end up valid in even lanes only)')
SC=52; MX=62; ACC=40; SUM=63; PK=[56,57,58,59]; AB=[16,20]
def red(R):
    d=QD_+4*R
    return [f"v_pk_add_f32 {V(d,2)}, {V(d,2)}, {V(d+2,2)}", f"v_add_f32_dpp v{SC+R}, v{d+1}, v{d} quad_perm:[1,1,3,3]{DPP}"]
for R in range(4):
    for f in range(6):
        if R==0: e(f"s_waitcnt lgkmcnt({0 if DBG else 5-f})")
        if R==0 and f==0: fine("QK",13)
        SM(V(QD_+4*R),V(QFR+4*f),kpair(6*R+f),0)
        if R==1 and f==4 and P("QW",0): e(f"s_cmp_eq_u32 s{sLB}, 0"); e("s_cbranch_scc1 QKW"); e("s_waitcnt vmcnt(0)"); lab("QKW")
        if R>=2 and f==2: e(red(R-2)[0])
        if R>=2 and f==4: e(red(R-2)[1])
fine("QK",14)
e(red(2)[0]); e(f"v_max_f32 v{MX}, v{SC}, v{SC+1}"); e("s_nop 0"); e(red(2)[1])
e("s_nop 3")
e(red(3)[0]); e("s_nop 1"); e(red(3)[1])
e(f"v_max3_f32 v{MX}, v{MX}, v{SC+2}, v{SC+3}")
fine("QK",15)
for pat in ("quad_perm:[2,3,0,1]","row_ror:4","row_ror:8"):
    e("s_nop 1"); e(f"v_max_f32_dpp v{MX}, v{MX}, v{MX} {pat}{DPP}")
swapadd(MX,63,16,"max"); swapadd(MX,63,32,"max")
stamp(5)
cm('===== PV')
def aprep(R,z):
    a=AB[z]; q=2*z
    return [f"v_and_b32_dpp v{a}, v{PK[R]}, v{vMK} quad_perm:[{q},{q},{q},{q}]{DPP}", f"v_and_b32_dpp v{a+3}, v{PK[R]}, v{vMK+1} quad_perm:[{q},{q},{q},{q}]{DPP}",
            f"v_mov_b32_dpp v{a+1}, v{a} row_shr:4{DPP} bound_ctrl:0", f"v_mov_b32_dpp v{a+2}, v{a+3} row_shl:4{DPP} bound_ctrl:0"]
EXP=lambda R: f"v_exp_f32 v{SC+R}, v{SC+R}"
CVT=lambda R: f"v_cvt_pk_bf16_f32 v{PK[R]}, v{SC+R}, v{SC+R}"
SUB=lambda R: f"v_pk_add_f32 {V(SC+R,2)}, {V(SC+R,2)}, {V(MX,2)} op_sel_hi:[1,0] neg_lo:[0,1] neg_hi:[0,1]"
a0=aprep(0,0); TS=24; TO=64
for x in [SUB(0),EXP(0),SUB(2),CVT(0),EXP(1),EXP(2),a0[0],a0[1],EXP(3),a0[2],a0[3],CVT(1)]: e(x)
sumred=[f"v_add_f32_dpp v{SUM}, v{SUM}, v{SUM} quad_perm:[2,3,0,1]{DPP}", f"v_add_f32_dpp v{SUM}, v{SUM}, v{SUM} row_ror:4{DPP}", f"v_add_f32_dpp v{SUM}, v{SUM}, v{SUM} row_ror:8{DPP}"]
MV=f"v_mov_b32 v{TS}, v{SUM}"; AD=f"v_add_f32 v{SUM}, v{SUM}, v{TS}"
pre={(0,0):[f"ds_read_b128 {V(TO)}, v{vTB} offset:{T_O1}"],(0,1):[f"ds_read_b128 {V(TO+4)}, v{vTB} offset:{T_O2}"],(1,1):[sumred[1]],(2,0):[f"v_permlane16_swap_b32 v{SUM}, v{TS}",AD],(2,1):[f"v_permlane32_swap_b32 v{SUM}, v{TS}",AD]}
extra={(0,0):[CVT(2),f"v_pk_add_f32 {V(TS,2)}, {V(SC,2)}, {V(SC+2,2)}"],(0,1):[CVT(3),f"v_add_f32 v{SUM}, v{TS}, v{TS+1}"],(1,0):[sumred[0]],(1,1):[sumred[2],MV],(2,0):[MV],(2,1):["s_waitcnt lgkmcnt(0)",f"ds_write2_b32 v{TO+7}, v{MX}, v{MX+1} offset0:0 offset1:4"],(3,0):["s_mov_b32 vcc_lo, 0x00ff00ff"]}
for R in range(4):
    e(f"s_waitcnt vmcnt({48-12*(R+1)})")
    for z in range(2):
        S_=lambda sg: SM(V(ACC+4*sg),V(AB[z]),vpair(6*R+3*z+sg),1)
        if (R,z)!=(3,1):
            a=aprep(R,1) if z==0 else aprep(R+1,0)
            S_(0)
            for x in pre.get((R,z),[]): e(x)
            e(a[0]); e(a[1]); S_(1); e(a[2]); e(a[3])
            for x in extra[(R,z)]: e(x)
            S_(2)
        else:
            S_(0); S_(1); S_(2)
stamp(6)
cm('===== EXIT')
TO=64
e("s_mov_b32 vcc_hi, 0xff00ff00"); e(f"v_cmp_eq_u32 s[60:61], 24, v{vL}")
e("s_nop 4")
for i in range(4): e(f"v_cndmask_b32_dpp v{ACC+i}, v{ACC+4+i}, v{ACC+i}, vcc row_ror:8{DPP}")
e(f"ds_write_b128 v15, {V(ACC)}")
for i in range(2): e(f"v_cndmask_b32_dpp v{ACC+8+i}, v{ACC+10+i}, v{ACC+8+i}, vcc row_ror:8{DPP}")
e(f"ds_write_b64 v61, {V(ACC+8,2)}")
e(f"s_cmp_eq_u32 s{sLB}, 0"); e("s_cbranch_scc1 HOOKC")
lab("EXB")
with Tail():
    lab("HOOKC")
    e(f"s_cmp_eq_u32 s{sWv}, 3"); e("s_cbranch_scc1 EXB")
    if P("EWM",1):
        e(f"s_cmp_eq_u32 s{sWv}, 1"); e("s_cbranch_scc1 WM1"); e(f"s_cmp_eq_u32 s{sWv}, 2"); e("s_cbranch_scc1 WM2")
    warm(83,83,(XS0//128+40+31)//32,W_XR,XS0)
    if P("EWM",1):
        e("s_branch WM3"); lab("WM1")
        warm(83,83,(XS1//128+31)//32,LS+W_GB,XS1)
        e("s_branch WM3"); lab("WM2")
        warm(83,83,12,W_QC,4*12288)
        lab("WM3")
    dmaaddr(57,58,56,3072)
    dmaaddr(57,58,55,1280)
    e("s_barrier")
    stamp(3)
    e(f"s_cmp_ge_u32 s{sR}, 20"); e("s_cbranch_scc1 HC8")
    dma3(SWO,55,[(sX,768*1280),(sP,384*1280),(sCG,128)],L_WO,49152,1280)
    lab("HC8")
    e(f"s_cmp_ge_u32 s{sR}, 30"); e("s_cbranch_scc1 HC7")
    dma3(SW13,56,[(sRG,128*3072),(sX,384),(sCGRP,128)],L_W13,16384,3072)
    lab("HC7")
    stamp(14)
    e("s_branch EXB")
fine("EX",12)
e("s_waitcnt lgkmcnt(0)"); e("s_barrier")
fine("EX",13)
e(f"ds_read_b128 v[16:19], v{TO+6}"); e(f"ds_read_b128 v[20:23], v{TO+6} offset:16")
for k in range(8): e(f"ds_read_b64 {V(24+2*k,2)}, v60 offset:{768*k}")
e(f"s_mov_b32 s{sCNT}, 0"); e(f"s_cmp_eq_u32 s{sLB}, 0"); e(f"s_cselect_b32 s{sT0}, 20, s{sR}")
e("s_waitcnt lgkmcnt(9)")
fine("EX",14)
e("v_max3_f32 v40, v16, v17, v18"); e("v_max_f32 v40, v40, v19")
for w in (0,2): e(f"v_pk_add_f32 {V(16+w,2)}, {V(16+w,2)}, v[40:41] op_sel_hi:[1,0] neg_lo:[0,1] neg_hi:[0,1]")
for w in range(4): e(f"v_exp_f32 v{16+w}, v{16+w}")
e("s_waitcnt lgkmcnt(0)")
e("v_pk_mul_f32 v[20:21], v[20:21], v[16:17]"); e("v_pk_fma_f32 v[20:21], v[22:23], v[18:19], v[20:21]"); e("v_add_f32 v41, v20, v21")
e("v_rcp_f32 v42, v41"); e("v_log_f32 v43, v41")
fine("EX",15)
for w in range(4): e(f"v_pk_add_f32 {V(24+4*w,2)}, {V(24+4*w,2)}, {V(26+4*w,2)}")
e("v_pk_mul_f32 v[24:25], v[24:25], v[16:17] op_sel_hi:[1,0]")
for w in range(1,4): e(f"v_pk_fma_f32 v[24:25], {V(24+4*w,2)}, {V(16+(w&2),2)}, v[24:25] op_sel:[0,{w&1},0] op_sel_hi:[1,{w&1},1]")
e("v_pk_mul_f32 v[24:25], v[24:25], v[42:43] op_sel_hi:[1,0]"); e("v_add_f32 v43, v43, v40")
e("v_cvt_pk_bf16_f32 v24, v24, v25"); e("v_cndmask_b32 v24, v24, v43, s[60:61]")
pubs([pub(24,14,"I")],7)
e(f"s_cmp_ge_u32 s{sT0}, 20"); e("s_cbranch_scc1 HOOKG")
def qcpub(tag):
    e(f"s_cmp_lg_u32 s{sWv}, 3"); e(f"s_cbranch_scc1 QCN{tag}")
    e(f"v_lshlrev_b32 v38, 2, v{vL}"); e(f"v_add_u32 v39, {L_CSP}, v38"); e("v_lshlrev_b32 v38, 1, v38")
    for k in range(3): e(f"ds_read_b32 v{32+2*k}, v39 offset:{256*k}")
    sc(sT0,[(sH,12288),(sS,1536)],W_QC); fs(sT1,sT2,sT0); e("s_waitcnt lgkmcnt(0)")
    for k in range(3): e(f"v_xor_b32 v{33+2*k}, s{sNON}, v{32+2*k}")
    pubs([pub(32+2*k,38,(sT1,sT2),512*k,2) for k in range(3)])
    e(f"s_branch QCM{tag}")
    lab(f"QCN{tag}")
    e("s_waitcnt vmcnt(1)")
    lab(f"QCM{tag}")
OA=44; OL=56; OX=57
def woloads():
    e(f"buffer_load_dword v{OL}, v{TO+1}, {S(SW)}, s{sIB} offen sc1")
    for j in range(3): e(f"buffer_load_dwordx4 {V(OA+4*j)}, v{TO}, {S(SW)}, s{sIB} offen offset:{512*j} sc1")
    e(f"buffer_load_dword v{OX}, v{TO+2}, {S(SW)}, s{sLB} offen sc1")
with Tail():
    lab("HOOKG")
    e(f"s_cmp_lg_u32 s{sLB}, 0"); e("s_cbranch_scc1 WOX")
    e(f"s_cmp_ge_u32 s{sR}, 20"); e("s_cbranch_scc1 HOOKG3")
    tr128(72,73); e(f"s_mul_i32 s{sT0}, s{sWv}, 12288"); e(f"v_add_u32 v72, s{sT0}, v72")
    for tl in range(1,4): e(f"v_xor_b32 v{72+tl}, {32*tl}, v72")
    qcpub("A"); e("s_barrier")
    stamp(15)
    woloads()
    for tl in range(4):
        for j in range(3):
            for hf in range(2): e(f"ds_read_b64_tr_b16 {V(BO+16*j+4*tl+2*hf,2)}, v{72+tl} offset:{L_WO+4096*j+512*hf}")
    e("s_waitcnt lgkmcnt(0) vmcnt(0)"); e("s_branch WOC")
    lab("HOOKG3")
    qcpub("B"); e("s_barrier")
    stamp(15)
    e(f"s_cmp_lg_u32 s{sR}, 31"); e("s_cbranch_scc1 EW1"); e(f"s_cmp_lg_u32 s{sWv}, 0"); e("s_cbranch_scc1 WOX")
    e(f"v_and_b32 v32, 31, v{vL}"); e("v_lshlrev_b32 v32, 2, v32"); e(f"v_add_u32 v32, {I_LSE}, v32"); sc(sT0,[(sX,128)],W_EW); e(f"v_lshlrev_b32 v34, 13, v{vL}")
    lab("EWP")
    e(f"buffer_load_dword v33, v32, {S(SW)}, s{sIB} offen sc1"); e("s_waitcnt vmcnt(0)")
    retry("EWP","EWOK",("v33","v33"),-1)
    ex(3); e(f"buffer_store_dword v34, v34, {S(SW)}, s{sT0} offen sc1"); ex(-1)
    lab("EW1")
    e(f"s_cmp_ge_u32 s{sR}, 30"); e("s_cbranch_scc1 WOX"); e(f"s_cmp_eq_u32 s{sWv}, 3"); e("s_cbranch_scc1 HD0")
    w2dma(32,33,34)
    lab("HD0")
    assert 40*1280>=XS1 and 320*512>=W_GB
    e("v_mov_b64 v[116:117], -1"); e("v_mov_b64 v[118:119], -1"); e(f"v_mov_b32 v23, {OOB}")
    sc(sT0,[(sCG,5120),(sWv,1280)]); e(f"v_lshl_add_u32 v120, v{vL}, 4, s{sT0}"); e(f"s_add_u32 s{sT0}, s{sT0}, 1024"); e(f"v_lshl_add_u32 v121, v{vL}, 2, s{sT0}")
    sc(sT0,[(sCG,8*2048),(sX,2048),(sWv,512)]); e(f"v_lshl_add_u32 v122, v{vL}, 3, s{sT0}")
    keep(120,f"v_cmp_gt_u32 vcc, {XS1}, v120"); keep(121,f"v_cmp_gt_u32 vcc, {XS1}, v121"); keep(122,f"v_cmp_gt_u32 vcc, {W_GB}, v122")
    e("s_branch F1E")
cm('===== WO stage (wave = head (w>>1), k half (w&1))')
gate("DO0",2); fine("WO",13)
woloads()
gate("DO1",2)
lab("WOP")
woloads()
gate("DO2",0)
e(f"s_waitcnt vmcnt(5)")
lab("WOC")
fine("WO",14)
N="s_nop 0"
def post(tl):
    d=16+4*tl
    return [f"v_mul_f32_dpp v{36+tl}, v34, v{d} row_newbcast:0{DPP}"]+[f"v_fmac_f32_dpp v{36+tl}, v34, v{d+i} row_newbcast:{i}{DPP}" for i in (1,2,3)]
fl=[[f"v_mov_b32 v32, v{OL}",f"v_max3_u32 v63, v{OA}, v{OA+4}, v{OA+8}"],["v_max_u32 v63, v63, v32",f"v_max_f32_dpp v33, v32, v32 quad_perm:[1,0,3,2]{DPP}"],["v_cmp_eq_u32 vcc, -1, v63",f"v_max_f32_dpp v33, v33, v33 quad_perm:[2,3,0,1]{DPP}"],
      ["s_cbranch_vccnz AGWOP",f"v_max_f32_dpp v33, v33, v33 row_half_mirror{DPP}","v_sub_f32 v34, v32, v33"],
      ["v_exp_f32 v34, v34",N],[f"v_add_f32_dpp v33, v34, v34 quad_perm:[1,0,3,2]{DPP}",N],[f"v_add_f32_dpp v33, v33, v33 quad_perm:[2,3,0,1]{DPP}",N],[f"v_add_f32_dpp v33, v33, v33 row_half_mirror{DPP}","v_rcp_f32 v33, v33"],
      ["v_mul_f32 v34, v34, v33",N],post(0)[:2],post(0)[2:],post(1)[:2]]
for tl in range(4):
    for j in range(3):
        d=V(16+4*tl); MF(d,V(OA+4*j),V(BO+16*j+4*tl),"0" if j==0 else d)
        for x in fl.pop(0): e(x)
for x in post(1)[2:]+post(2): e(x)
e(f"v_cmp_u_f32 vcc, v36, v{OX}"); e("s_mov_b32 exec_hi, 0")
for x in post(3): e(x)
e(f"ds_write_b128 v{TO+4}, v[36:39]"); ex(-1)
fail("vccnz","WOP",SLEEPI)
fine("WO",15); finecnt("WO")
e(f"s_cmp_lg_u32 s{sWv}, 3")
e("s_waitcnt lgkmcnt(0)"); e("s_barrier")
e("s_cbranch_scc1 WOX")
for k in range(4): e(f"ds_read2st64_b32 {V(16+2*k,2)}, v{TO+5} offset0:{2*k} offset1:{2*k+1}")
e("s_waitcnt lgkmcnt(2)"); e("v_pk_add_f32 v[16:17], v[16:17], v[18:19]"); e(f"v_add_f32 v16, v16, v{OX}"); e("s_waitcnt lgkmcnt(0)")
e("v_pk_add_f32 v[20:21], v[20:21], v[22:23]"); e("v_pk_add_f32 v[16:17], v[16:17], v[20:21]"); e("v_add_f32 v16, v16, v17")
e(f"buffer_store_dword v16, v{TO+3}, {S(SW)}, s{sFAR} offen sc1"); e(f"buffer_store_dword v16, v{TO+3}, {S(SW)}, s{sNEAR} offen sc1")
lab("WOX")
stamp(8)
cm('===== FFN1 stage')
e(f"s_cmp_ge_u32 s{sR}, 30"); e("s_cbranch_scc1 STX")
BF=64; TF=52; FG=44; GCR=104
e(f"s_cmp_eq_u32 s{sWv}, 3"); e("s_cbranch_scc1 F1W3"); e("s_waitcnt vmcnt(0)"); lab("F1W3"); e("s_waitcnt vmcnt(2)")
lab("F1E")
tread(TF+4,T_F2); tread(TF,T_F1); tread(TF+8,T_W); e("s_mov_b32 s100, 0"); e(f"s_mov_b32 s{sCNT}, 0"); e("s_waitcnt lgkmcnt(0)")
for ks in range(4):
    for hf in range(2): e(f"ds_read_b64_tr_b16 {V(BF+4*ks+2*hf,2)}, v{TF+5} offset:{L_W13+4096*ks+512*hf}")
e(f"s_cmp_eq_u32 s{sLB}, 0"); e("s_cbranch_scc1 HOOKD")
e(f"s_cmp_lt_u32 s{sR}, 20"); e("s_cbranch_scc1 GFB"); gate("GF2",11); lab("GFB")
gate("GF1",11)
with Tail():
    lab("HOOKD")
    for ks in range(4): e(f"ds_read_b128 {V(20+4*ks)}, v{vA} offset:{256+64*ks}")
    e("s_waitcnt lgkmcnt(0)")
    for ks in range(4): MF(V(40),V(20+4*ks),V(BF+4*ks),"0" if ks==0 else V(40))
    e(f"s_add_u32 s{sT0}, s{sIB}, {C_G-I_G}"); fs(sT1,sT2,sT0); e("s_nop 3")
    pubs([pub(41,TF+3,(sT1,sT2))])
    e(f"v_and_b32 v16, 7, v{vL}"); e("v_lshlrev_b32 v16, 7, v16"); e(f"s_add_u32 s{sT0}, s{sNR}, {W_EW}")
    lab("EWQ")
    e(f"buffer_load_dword v17, v16, {S(SW)}, s{sT0} offen sc1"); e("s_waitcnt vmcnt(0)")
    retry("EWQ","EWQK",("v17","v17"),1)
    gate("GF0",1); e(f"s_mov_b32 s{sCNT}, 0")
    e(f"s_cmp_lt_u32 s{sR}, 20"); e("s_cbranch_scc1 F1W")
    e("s_mov_b32 s100, 3")
    fs(sT1,sT2,63); pubs([pub(116,120,(sT1,sT2),0,4),pub(116,121,(sT1,sT2))])
    e(f"s_mov_b32 s{sT0}, {LS}"); e(f"buffer_store_dwordx2 v[116:117], v122, {S(SW)}, s{sT0} offen sc1")
    def gcloads():
        e(f"s_add_u32 s{sT0}, s{sIB}, {C_G-I_G}")
        for j in range(2): e(f"buffer_load_dwordx4 {V(GCR+4*j)}, v{TF+6}, {S(SW)}, s{sT0} offen offset:{3072*j} sc1")
        e(f"buffer_load_dwordx2 {V(GCR+8,2)}, v{TF+7}, {S(SW)}, s{sT0} offen sc1")
    GCM=P("GCM",1)
    def gcsum():
        e(f"v_pk_add_f32 {V(GCR+10,2)}, {V(GCR,2)}, {V(GCR+2,2)}"); e(f"v_pk_add_f32 {V(GCR+12,2)}, {V(GCR+4,2)}, {V(GCR+6,2)}"); e(f"v_add_f32 v{vCSG}, v{GCR+10}, v{GCR+11}"); e(f"v_add_f32 v{vCSU}, v{GCR+12}, v{GCR+13}")
        e(f"v_pk_add_f32 {V(vCSG,2)}, {V(vCSG,2)}, {V(GCR+8,2)}")
    def bw2():
        for ks in range(6):
            for hf in range(2): e(f"ds_read_b64_tr_b16 {V(BO+4*ks+2*hf,2)}, v{TF+5} offset:{L_WO+4096*ks+512*hf}")
    if GCM: e("s_branch F1P")
    else:
        lab("F1P")
        e("s_cmp_lg_u32 s100, 3"); e("s_cbranch_scc1 F1W")
        gcloads()
        e("s_branch F1W")
        lab("GCP")
        gcloads(); e("s_waitcnt vmcnt(0)")
        lab("HOOKI")
        gcsum()
        retry("GCP","GCOK",(f"v{vCSG}",f"v{vCSU}"),-1)
        bw2()
        e("s_branch W2P")
if GCM: lab("F1P")
lab("F1W")
fine("F1",14)
for j in range(8): e(f"buffer_load_dword v{FG+j}, v{TF}, {S(SW)}, s{sNEAR} offen offset:{128*j} sc1")
e("s_waitcnt vmcnt(0)")
e(f"v_pk_add_f32 v[16:17], {V(FG,2)}, {V(FG+2,2)}"); e(f"v_pk_add_f32 v[18:19], {V(FG+4,2)}, {V(FG+6,2)}"); e("v_pk_add_f32 v[16:17], v[16:17], v[18:19]"); e("v_add_f32 v16, v16, v17"); swapadd(16,17,32)
e("v_cmp_u_f32 vcc, v16, v16"); e("v_cvt_pk_bf16_f32 v16, v16, v16"); e(f"ds_write_b16 v{TF+1}, v16")
fail("vccnz","F1P",SLEEP)
stamp(9); finecnt("F1")
e("v_and_b32 v16, 0xffff0000, v16"); pubs([pub(16,TF+2,"L")])
e("s_waitcnt lgkmcnt(0)"); e("s_barrier")
for ks in range(4): e(f"ds_read_b128 {V(20+4*ks)}, v{vA} offset:{256+64*ks}")
for ks in range(4):
    e(f"s_waitcnt lgkmcnt({3-ks})")
    MF(V(40),V(20+4*ks),V(BF+4*ks),"0" if ks==0 else V(40))
    MF(V(36),V(20+4*ks),V(20+4*ks),"0" if ks==0 else V(36))
e(f"s_mov_b32 s{sCNT}, 0"); e("s_nop 5")
pubs([pub(40,TF+3,"I"),pub(36,TF+4,"I",0,2)],10)
cm('===== W2 stage')
e(f"s_cmp_lt_u32 s{sR}, 20"); e("s_cbranch_scc1 STX")
WG=64; WS_=74; WX=76
def w2loads():
    e(f"buffer_load_dword v{WS_}, v{TF+8}, {S(SW)}, s{sIB} offen sc1")
    for j in range(2): e(f"buffer_load_dwordx4 {V(WG+4*j)}, v{TF+6}, {S(SW)}, s{sIB} offen offset:{3072*j} sc1")
    e(f"buffer_load_dwordx2 {V(WG+8,2)}, v{TF+7}, {S(SW)}, s{sIB} offen sc1")
    e(f"buffer_load_dword v{WX}, v{TF+9}, {S(SW)}, s{sLB} offen sc1")
if GCM:
    e(f"s_cmp_eq_u32 s{sLB}, 0"); e("s_cbranch_scc1 HOOKI")
    with Tail():
        lab("HOOKI")
        gcloads(); bw2(); gate("DWL",0)
        w2loads(); gate("DWM",1)
        e("s_waitcnt vmcnt(5)")
        lab("GCC")
        gcsum()
        e(f"v_cmp_u_f32 vcc, v{vCSG}, v{vCSU}"); e("s_cbranch_vccz W2P")
        gcloads(); e("s_waitcnt vmcnt(0)")
        again("GCC",-1)
        e("s_branch W2P")
gate("DW0",2); fine("W2",13)
w2loads()
if not GCM: e(f"s_cmp_eq_u32 s{sLB}, 0"); e("s_cbranch_scc1 HOOKI")
gate("DW1",2)
lab("W2P")
w2loads()
gate("DW2",0)
e("s_waitcnt vmcnt(5)")
fine("W2",14)
sred(0,48,WS_); e(f"v_pk_add_f32 v[18:19], {V(WG,2)}, {V(WG+2,2)}"); e(f"v_pk_add_f32 v[20:21], {V(WG+4,2)}, {V(WG+6,2)}")
sred(1,48,48); e("v_add_f32 v16, v18, v19"); e("v_add_f32 v17, v20, v21")
sred(2,48,48); e(f"v_pk_add_f32 v[16:17], v[16:17], {V(WG+8,2)}"); e("v_mov_b32 v46, 0x3727c5ac")
e(f"v_mul_f32_dpp v47, v48, v11 row_newbcast:8{DPP}"); e(f"v_fmac_f32_dpp v46, v48, v11 row_newbcast:0{DPP}"); e("v_fma_f32 v46, -v47, v47, v46"); e("v_rsq_f32 v48, abs(v46)")
e(f"v_pk_fma_f32 v[16:17], v[46:47], v[{vCSG}:{vCSU}], v[16:17] op_sel:[1,0,0] op_sel_hi:[1,1,1] neg_lo:[1,0,0] neg_hi:[1,0,0]")
e("v_pk_mul_f32 v[16:17], v[16:17], v[48:49] op_sel_hi:[1,0]")
e("v_mul_f32 v18, 0xbfb8aa3b, v16"); e("v_exp_f32 v18, v18"); e("v_mul_f32 v16, v16, v17"); e("v_add_f32 v18, 1.0, v18"); e("v_rcp_f32 v18, v18"); e(f"v_cmp_u_f32 vcc, v16, v{WX}"); e("v_mul_f32 v16, v16, v18")
e("v_cvt_pk_bf16_f32 v16, v16, v16"); e(f"ds_write_b16 v{TF+11}, v16")
fail("vccnz","W2P",SLEEPI)
fine("W2",15); finecnt("W2")
fine("WT",13)
e("s_waitcnt lgkmcnt(0)"); e("s_barrier")
fine("WT",14)
for ks in range(6): e(f"ds_read_b128 {V(16+4*ks)}, v{vA} offset:{512+64*ks}")
e(f"v_mov_b32 v40, v{WX}"); e("s_nop 0")
for ks in range(6):
    e(f"s_waitcnt lgkmcnt({5-ks})"); MF(V(40),V(16+4*ks),V(BO+4*ks),V(40))
fine("WT",15)
e("s_waitcnt vmcnt(0)"); e("s_nop 6")
e(f"buffer_store_dword v40, v{TF+10}, {S(SW)}, s{sLB} offen sc1")
lab("STX")
stamp(11)
if P("STOP0",0): flush_stamps("Z",0); e("s_endpgm")
e(f"s_cmp_lg_u32 s{sLB}, 0"); e("s_cbranch_scc1 LAST")
if P("NOFA",0): stamp(1)
else: flush_stamps("A",0)
e("s_branch LOOP")
lab("LAST")
e(f"s_and_b32 s{sT0}, s2, 0xc7"); e(f"s_cmp_eq_u32 s{sT0}, 0"); e("s_cbranch_scc1 LOOP")
flush_stamps("B",0 if P("NOFA",0) else 1)
e("s_endpgm")
lab("FINAL")
e(f"s_cmp_eq_u32 s{sWv}, 3"); e("s_cbranch_scc1 FINX")
gate("GY1",22); e("s_waitcnt lgkmcnt(0)")
lab("Y3P")
y2loads(); y2sum()
fail("vccnz","Y3P",SLEEP)
e(f"buffer_store_short v30, v21, {S(SOUT)}, 0 offen")
lab("FINX")
stamp(12)
if os.environ.get("SPIN"):
    e("s_waitcnt lgkmcnt(0)")
    if SPE<0: e("s_mov_b32 s92, s95")
    if P("SPD",0):
        e("s_memrealtime s[96:97]"); e("s_waitcnt lgkmcnt(0)"); e("s_sub_u32 s92, s96, s92"); e(f"s_mul_i32 s92, s92, {P('SPD',0)}"); e("s_add_u32 s92, s92, s95"); e("s_sub_u32 s92, s92, 8000")
    lab("SPINL"); e("s_memrealtime s[96:97]"); e("s_waitcnt lgkmcnt(0)"); e("s_sub_u32 s96, s96, s92"); e(f"s_cmp_lt_u32 s96, {os.environ['SPIN']}"); e("s_cbranch_scc1 SPINL")
flush_stamps("C",0 if P("NOFA",0) else 1)
lab("DONE")
e("s_endpgm")
o+=tail
o+=slow
lab("CODEEND")
e("s_endpgm")
o.append('''.section .rodata,"a"
.p2align 6
.amdhsa_kernel %s_kernel
  .amdhsa_next_free_vgpr 512
  .amdhsa_next_free_sgpr 102
  .amdhsa_accum_offset 256
  .amdhsa_group_segment_fixed_size 0
  .amdhsa_kernarg_size 96
  .amdhsa_user_sgpr_count 2
  .amdhsa_user_sgpr_kernarg_segment_ptr 1
  .amdhsa_system_sgpr_workgroup_id_x 1
.end_amdhsa_kernel''' % NAME)
src="\n".join(o)+"\n"
for m in re.finditer(r"buffer_\S+ .*offset:(\d+)",src): assert int(m.group(1))<4096, m.group(0)
for m in re.finditer(r"ds_\S+ .*offset:(\d+)",src): assert int(m.group(1))<65536, m.group(0)
assert all((c*52)>>8==c//5 for c in range(15))
open(OUT,"w").write(src)
print("lds",LDSSZ,tm)
```
